```python
import torch

def _softmax(x, axis=-1):
    return torch.softmax(x, dim=axis)
def _gelu(x):
    return torch.nn.functional.gelu(x, approximate="tanh")
def _silu(x):
    return torch.nn.functional.silu(x)
def _sigmoid(x):
    return torch.sigmoid(x)
def _layernorm(x, axis=-1, eps=1e-5):
    m = x.mean(dim=axis, keepdim=True)
    v = x.var(dim=axis, keepdim=True, unbiased=False)
    return (x - m) / torch.sqrt(v + eps)
def _scatter_add(tgt, idx, src, axis=0):
    return tgt.clone().index_add_(axis, idx, src)
def _segment_sum(src, seg, n):
    out = torch.zeros((n,) + src.shape[1:], dtype=src.dtype)
    return out.index_add_(0, seg, src)
def _pad(x, pw):
    flat = tuple(v for pair in reversed(pw) for v in pair)
    return torch.nn.functional.pad(x, flat)

kernel_name = 'gated_mix__ssm_conv_s4d__ssm_conv_s4__prompt'

def setup_inputs():

    _w = (lambda a: (lambda t: t.to(torch.bfloat16) if t.is_floating_point() else t)(torch.as_tensor(a)))
    def _A_setup():
        Bsz, L, D, N = 1, 2048, 512, 128
        return {
            "u": _w((lambda *s: torch.randn(*s, dtype=torch.bfloat16) * 0.05)(Bsz, L, D)),
            "log_A_real": _w((lambda *s: torch.randn(*s, dtype=torch.bfloat16) * 3.2)(D, N) * 0.5),
            "A_imag": _w((lambda *s: torch.randn(*s, dtype=torch.bfloat16) * 0.05)(D, N) * 3.14),
            "C_real": _w((lambda *s: torch.randn(*s, dtype=torch.bfloat16) * 0.1)(D, N) / N ** 0.5),
            "C_imag": _w((lambda *s: torch.randn(*s, dtype=torch.bfloat16) * 0.1)(D, N) / N ** 0.5),
            "log_dt": _w((lambda *s: torch.randn(*s, dtype=torch.bfloat16) * 0.05)(D) * 0.5 - 4.0),
            "D_skip": _w((lambda *s: torch.randn(*s, dtype=torch.bfloat16) * 0.05)(D)),
        }
    _A_in = _A_setup()

    def _B_setup():
        B, L, D, N = 1, 2048, 512, 128
        A_re = -(lambda _x: torch.exp(torch.as_tensor(_x)))((lambda *s: torch.randn(*s, dtype=torch.bfloat16) * 3.2)(D, N))
        A_im = torch.pi * (lambda *s: torch.randn(*s, dtype=torch.bfloat16) * 0.05)(D, N)
        B_re = (lambda *s: torch.randn(*s, dtype=torch.bfloat16) * 0.1)(D, N)
        B_im = (lambda *s: torch.randn(*s, dtype=torch.bfloat16) * 0.1)(D, N)
        C_re = (lambda *s: torch.randn(*s, dtype=torch.bfloat16) * 0.1)(D, N)
        C_im = (lambda *s: torch.randn(*s, dtype=torch.bfloat16) * 0.1)(D, N)
        log_dt = (lambda *s: torch.randn(*s, dtype=torch.bfloat16) * 0.05)(D) * 0.5 - 4.0
        Dskip = (lambda *s: torch.randn(*s, dtype=torch.bfloat16) * 0.05)(D)
        return {
            "u": _w((lambda *s: torch.randn(*s, dtype=torch.bfloat16) * 0.05)(B, L, D)),
            "A_re": _w(A_re),
            "A_im": _w(A_im),
            "B_re": _w(B_re),
            "B_im": _w(B_im),
            "C_re": _w(C_re),
            "C_im": _w(C_im),
            "log_dt": _w(log_dt),
            "Dskip": _w(Dskip),
        }
    _B_in = _B_setup()

    return {
        "A_u": _A_in["u"],
        "A_log_A_real": _A_in["log_A_real"],
        "A_A_imag": _A_in["A_imag"],
        "A_C_real": _A_in["C_real"],
        "A_C_imag": _A_in["C_imag"],
        "A_log_dt": _A_in["log_dt"],
        "A_D_skip": _A_in["D_skip"],
        "B_u": _B_in["u"],
        "B_A_re": _B_in["A_re"],
        "B_A_im": _B_in["A_im"],
        "B_B_re": _B_in["B_re"],
        "B_B_im": _B_in["B_im"],
        "B_C_re": _B_in["C_re"],
        "B_C_im": _B_in["C_im"],
        "B_log_dt": _B_in["log_dt"],
        "B_Dskip": _B_in["Dskip"],
        "gate_w": _w((lambda *s: torch.randn(*s, dtype=torch.bfloat16) * 0.05)(512) * 16.0),
    }

def reference(A_u, A_log_A_real, A_A_imag, A_C_real, A_C_imag, A_log_dt, A_D_skip, B_u, B_A_re, B_A_im, B_B_re, B_B_im, B_C_re, B_C_im, B_log_dt, B_Dskip, gate_w):
    def _A_ref(u, log_A_real, A_imag, C_real, C_imag, log_dt, D_skip):
        L = u.shape[1]
        dt = torch.exp(log_dt)
        A = -torch.exp(log_A_real) + 1j * A_imag
        C = (C_real + 1j * C_imag) * dt[:, None]
        pos = (lambda x, dt: x.to(dt))(torch.arange(L), log_dt.dtype)
        P = torch.exp((A * dt[:, None])[:, :, None] * pos[None, None, :])
        K = 2.0 * torch.einsum("dn,dnl->dl", C, P).real
        L2 = 2 * L
        u_t = (lambda x, *d: x.permute(*d))(u, 0, 2, 1)
        Kf = (lambda x, *a, **k: torch.fft.rfft(x.float(), *a, **k))(K, L2)
        Uf = (lambda x, *a, **k: torch.fft.rfft(x.float(), *a, **k))(u_t, L2)
        y = (lambda x, *a, **k: torch.fft.irfft(x, *a, **k).to(torch.bfloat16))(Uf * Kf[None, :, :], L2)[:, :, :L]
        y = (lambda x, *d: x.permute(*d))(y, 0, 2, 1)
        return y + u * D_skip[None, None, :]

    def _B_ref(u, A_re, A_im, B_re, B_im, C_re, C_im, log_dt, Dskip):
        Bsz, L, D = u.shape
        dt = torch.exp(log_dt)[:, None]
        A = A_re + 1j * A_im
        Bc = B_re + 1j * B_im
        Cc = C_re + 1j * C_im
        logdA = dt * A
        dB = dt * Bc
        l = (lambda x, dt: x.to(dt))(torch.arange(L), A_re.dtype)
        P = torch.exp(logdA[:, :, None] * l[None, None, :])
        K = torch.einsum("dn,dnl,dn->dl", Cc, P, dB).real
        L2 = 2 * L
        Kp = _pad(K, ((0, 0), (0, L)))
        up = (lambda x, *d: x.permute(*d))(u, 0, 2, 1)
        up = _pad(up, ((0, 0), (0, 0), (0, L)))
        Kf = (lambda x, axes=(-2,-1): torch.fft.rfft2(x.float(), dim=axes))(Kp[:, None, :], axes=(-2, -1))
        Uf = (lambda x, axes=(-2,-1): torch.fft.rfft2(x.float(), dim=axes))(up[:, :, None, :], axes=(-2, -1))
        Yf = Uf * Kf[None, :, :, :]
        y = (lambda x, s, axes=(-2,-1): torch.fft.irfft2(x, s=s, dim=axes).to(torch.bfloat16))(Yf, (1, L2), axes=(-2, -1))[:, :, 0, :L]
        y = (lambda x, *d: x.permute(*d))(y, 0, 2, 1) + u * Dskip[None, None, :]
        return y

    x = A_u
    g = _sigmoid((x * gate_w).sum(-1, keepdims=True))
    a = _A_ref(x, A_log_A_real, A_A_imag, A_C_real, A_C_imag, A_log_dt, A_D_skip)
    b = _B_ref(x, B_A_re, B_A_im, B_B_re, B_B_im, B_C_re, B_C_im, B_log_dt, B_Dskip)
    return g * a + (1 - g) * b
```

```python
import sys, math, struct
NAME = "gated_mix__ssm_conv_s4d__ssm_conv_s4__prompt"
OPT = dict(a.split('=') for a in sys.argv[2:] if '=' in a)
STAMP = int(OPT.get('stamp', 0))
PHASES = eval(OPT.get('phases', '[[0,1],[2,3],[4,5],[6,7]]'))
NPH = len(PHASES)
out = []
def E(s): out.append("    " + s)
def Lb(s): out.append(s + ":")
def f2u(x): return struct.unpack('<I', struct.pack('<f', x))[0]
def v(i, n=1): return f"v{i}" if n == 1 else f"v[{i}:{i+n-1}]"
def s(i, n=1): return f"s{i}" if n == 1 else f"s[{i}:{i+n-1}]"
def nop(n):
    if n > 0: E(f"s_nop {n-1}")
OFF = [12, 3, 7, 6, 10, 12, 1, 0]
CS = 272 * 16
UCH = 8 * CS
U0 = 0
KR0 = 2 * UCH; KRS = 288 * 16
E0 = KR0 + 4 * KRS; ES = 544; EW = 16 * ES
Y0 = E0
YCB = 2048; YBUF = 4 * YCB
G0 = E0 + 2 * YBUF
CNT = E0 + 4 * EW
LDS = CNT + 16
offc = 0
for i, o in enumerate(OFF): offc |= o << (4 * i)
def stamp(k):
    if not STAMP: return
    E("s_memtime s[90:91]"); E("s_waitcnt lgkmcnt(0)")
    E("v_mov_b32 v250, s90"); E(f"v_mov_b32 v251, s92")
    E(f"buffer_store_dword v250, v251, s[12:15], 0 offen offset:{4*k}")
E("s_cmp_ge_u32 s2, 256"); E("s_cbranch_scc1 L_end")
E("s_load_dwordx2 s[4:5], s[0:1], 0")
E("s_load_dwordx2 s[8:9], s[0:1], 136")
E("s_load_dwordx2 s[16:17], s[0:1], 144")
E("s_load_dwordx2 s[12:13], s[0:1], 152")
E("v_lshrrev_b32 v1, 6, v0"); E("v_and_b32 v0, 63, v0")
E("v_readfirstlane_b32 s3, v1")
E("s_and_b32 s20, s2, 7"); E("s_lshr_b32 s21, s2, 3")
E("s_lshl_b32 s20, s20, 5"); E("s_add_u32 s20, s20, s21")
E("s_lshl_b32 s22, s20, 2")
E("s_mov_b32 s6, 0x200000"); E("s_mov_b32 s7, 0x20000")
E("s_mov_b32 s10, 0x200000"); E("s_mov_b32 s11, 0x20000")
E("s_mov_b32 s14, 0x200000"); E("s_mov_b32 s15, 0x20000")
E("s_mov_b32 s18, 256"); E("s_mov_b32 s19, 0x20000")
if STAMP:
    E("s_lshl_b32 s92, s2, 3"); E("s_add_u32 s92, s92, s3"); E("s_lshl_b32 s92, s92, 6"); E("s_add_u32 s92, s92, 0x100000")
E("s_cmp_ge_u32 s3, 4"); E("s_cbranch_scc1 L_helper")

E("s_and_b32 s23, s3, 1"); E("s_lshr_b32 s24, s3, 1")
E("s_cmp_eq_u32 s24, 0"); E("s_cbranch_scc0 L_ptrB")
E("s_load_dwordx4 s[28:31], s[0:1], 8")
E("s_load_dwordx4 s[36:39], s[0:1], 24")
E("s_load_dwordx2 s[40:41], s[0:1], 40")
E("s_load_dwordx4 s[32:35], s[0:1], 8")
E("s_branch L_ptrdone")
Lb("L_ptrB")
E("s_load_dwordx4 s[28:31], s[0:1], 64")
E("s_load_dwordx4 s[32:35], s[0:1], 80")
E("s_load_dwordx4 s[36:39], s[0:1], 96")
E("s_load_dwordx2 s[40:41], s[0:1], 112")
Lb("L_ptrdone")
E("s_load_dwordx2 s[42:43], s[0:1], 128")
E("s_lshl_b32 s25, s20, 1"); E("s_add_u32 s25, s25, s23"); E("s_lshl_b32 s25, s25, 8")
E("v_lshlrev_b32 v2, 2, v0"); E("v_add_u32 v2, s25, v2")
E("s_lshl_b32 s26, s2, 3"); E("s_lshl_b32 s27, s3, 1"); E("s_add_u32 s26, s26, s27"); E("s_lshl_b32 s26, s26, 10")
E("v_lshlrev_b32 v3, 4, v0"); E("v_add_u32 v4, s26, v3")
E("s_waitcnt lgkmcnt(0)")
stamp(0)
E("s_load_dword s44, s[40:41], s22")
E("global_load_dword v10, v2, s[28:29]"); E("global_load_dword v11, v2, s[30:31]")
E("global_load_dword v12, v2, s[36:37]"); E("global_load_dword v13, v2, s[38:39]")
E("global_load_dword v14, v2, s[32:33]"); E("global_load_dword v15, v2, s[34:35]")
E("buffer_load_dwordx4 v[16:19], v4, s[4:7], 0 offen")
E("buffer_load_dwordx4 v[20:23], v4, s[4:7], 0 offen offset:1024")
E("global_load_dwordx4 v[24:27], v3, s[42:43]")
E("s_mul_i32 s45, s3, %d" % KRS); E("s_add_u32 s45, s45, %d" % KR0)
E("s_mul_i32 s46, s3, %d" % EW); E("s_add_u32 s46, s46, %d" % E0)
for i in range(4): E(f"v_mov_b32 v{28+i}, 0")
E("v_and_b32 v5, 31, v0"); E("v_lshlrev_b32 v5, 4, v5"); E("v_add_u32 v5, s45, v5")
E("ds_write_b128 v5, v[28:31] offset:4096")
E(f"v_mov_b32 v5, {CNT}"); E("ds_write_b32 v5, v28")
E("s_waitcnt lgkmcnt(0)"); E("s_barrier")
VEW, VER, VKB, VUA, VYW = 6, 7, 8, 9, 5
E("v_lshlrev_b32 v6, 3, v0"); E("v_add_u32 v6, s46, v6")
E("v_and_b32 v32, 15, v0"); E("v_lshrrev_b32 v33, 4, v0")
E(f"v_mul_u32_u24 v7, {ES}, v32"); E("v_lshl_add_u32 v7, v33, 4, v7"); E("v_add_u32 v7, s46, v7")
E("v_lshlrev_b32 v8, 1, v32"); E("v_sub_u32 v8, v33, v8"); E("v_add_u32 v8, 30, v8"); E("v_lshlrev_b32 v8, 4, v8"); E("v_add_u32 v8, s45, v8")
E("v_add_u32 v34, 1, v32"); E("v_and_b32 v35, 7, v34"); E("v_lshrrev_b32 v34, 3, v34"); E("v_add_u32 v34, v34, v33")
E("v_lshlrev_b32 v36, 2, v35"); E(f"s_mov_b32 s47, {offc}"); E("v_lshrrev_b32 v36, v36, s47"); E("v_and_b32 v36, 15, v36")
E("v_add_u32 v34, v34, v36"); E("v_lshlrev_b32 v34, 4, v34"); E(f"v_mul_u32_u24 v9, {CS}, v35"); E("v_add_u32 v9, v9, v34")
E(f"s_mul_i32 s48, s23, {UCH}"); E("v_add_u32 v9, s48, v9")
E("s_cmp_eq_u32 s23, 0"); E("s_lshl_b32 s49, s44, 16"); E("s_and_b32 s50, s44, 0xffff0000")
E("s_cmp_eq_u32 s23, 0"); E("s_cselect_b32 s49, s49, s50")
L2E = f2u(1.4426950408889634);
E(f"s_mov_b32 s51, {L2E}"); E("v_mov_b32 v37, s49"); E("v_mul_f32 v37, s51, v37"); E("v_exp_f32 v37, v37"); nop(1)
E("v_cvt_pk_bf16_f32 v37, v37, v37"); E("v_and_b32 v37, 0xffff0000, v37")
E("s_waitcnt vmcnt(3)")
stamp(1)
def unpack(src, lo, hi):
    E(f"v_lshlrev_b32 v{lo}, 16, v{src}"); E(f"v_and_b32 v{hi}, 0xffff0000, v{src}")
unpack(10, 40, 41); unpack(11, 42, 43)
unpack(12, 44, 46); unpack(13, 45, 47)
E("s_cmp_eq_u32 s24, 0"); E("s_cbranch_scc0 L_parB")
for r in (40, 41): E(f"v_mul_f32 v{r}, s51, v{r}")
for r in (40, 41): E(f"v_exp_f32 v{r}, v{r}")
nop(1)
E("v_cvt_pk_bf16_f32 v48, v40, v41"); unpack(48, 40, 41)
for r in (40, 41): E(f"v_xor_b32 v{r}, 0x80000000, v{r}")
E("v_add_f32 v48, v37, v37"); E("v_mov_b32 v49, 0"); E("v_mov_b32 v50, v48"); E("v_mov_b32 v51, 0")
E("s_branch L_pardone")
Lb("L_parB")
unpack(14, 48, 50); unpack(15, 49, 51)
for r in (48, 49, 50, 51): E(f"v_mul_f32 v{r}, v37, v{r}")
Lb("L_pardone")
def cmul(d, x, m, t):
    E(f"v_pk_mul_f32 {v(t,2)}, {v(x,2)}, {v(m,2)} op_sel:[0,0] op_sel_hi:[0,1]")
    E(f"v_pk_fma_f32 {v(d,2)}, {v(x,2)}, {v(m,2)}, {v(t,2)} op_sel:[1,1,0] op_sel_hi:[1,0,1] neg_lo:[0,1,0]")
def cmul2(d, x, m, t=(76, 78)):
    for k in (0, 1): E(f"v_pk_mul_f32 {v(t[k],2)}, {v(x+2*k,2)}, {v(m+2*k,2)} op_sel:[0,0] op_sel_hi:[0,1]")
    for k in (0, 1): E(f"v_pk_fma_f32 {v(d+2*k,2)}, {v(x+2*k,2)}, {v(m+2*k,2)}, {v(t[k],2)} op_sel:[1,1,0] op_sel_hi:[1,0,1] neg_lo:[0,1,0]")
Q, W1, W8, W128, R, W2 = 52, 56, 60, 64, 68, 72
cmul2(Q, 44, 48)
E("v_mul_f32 v40, v37, v40"); E("v_mul_f32 v41, v37, v41"); E("v_mul_f32 v42, v37, v42"); E("v_mul_f32 v43, v37, v43")
E("v_mul_f32 v40, s51, v40"); E("v_mul_f32 v41, s51, v41")
E("v_mul_f32 v42, 0.15915494, v42"); E("v_mul_f32 v43, 0.15915494, v43")
def basepow(dst, t, conj):
    E(f"s_mov_b32 s52, {f2u(float(t))}")
    for k in (0, 1):
        E(f"v_mul_f32 v{44+k}, s52, v{40+k}"); E(f"v_mul_f32 v{46+k}, s52, v{42+k}")
    for k in (0, 1): E(f"v_fract_f32 v{46+k}, v{46+k}")
    for k in (0, 1): E(f"v_exp_f32 v{44+k}, v{44+k}")
    for k in (0, 1):
        E(f"v_cos_f32 v{dst+2*k}, v{46+k}"); E(f"v_sin_f32 v{dst+2*k+1}, v{46+k}")
    nop(1)
    for k in (0, 1):
        E(f"v_mul_f32 v{dst+2*k}, v{44+k}, v{dst+2*k}")
        E(f"v_mul_f32 v{dst+2*k+1}, {'-' if conj else ''}v{44+k}, v{dst+2*k+1}")
basepow(W8, 8, True)
pk = [80]
def putrow(src, row):
    t = pk[0]; pk[0] = 80 + (pk[0] - 80 + 2) % 8
    E(f"v_cvt_pk_bf16_f32 v{t}, v{src}, v{src+1}"); E(f"v_cvt_pk_bf16_f32 v{t+1}, v{src+2}, v{src+3}")
    E(f"ds_write_b64 v{VEW}, {v(t,2)} offset:{row*ES}")
E("v_mov_b32 v80, 0x3f80"); E("v_mov_b32 v81, 0x3f80"); E(f"ds_write_b64 v{VEW}, v[80:81]"); pk[0] = 82
putrow(W8, 1)
cmul2(R, W8, W8); putrow(R, 2)
for k in range(3, 16):
    cmul2(R, R, W8); putrow(R, k)
LF, HF, DT = 96, 128, 160
for ks in range(8): E(f"ds_read_b128 {v(LF+4*ks,4)}, v{VER} offset:{64*ks}")
E("s_waitcnt vmcnt(0)")
ONE2 = 0x3f803f80
E(f"s_mov_b32 s53, {ONE2}")
for j in range(4): unpack(24 + j, 176 + 2*j, 177 + 2*j)
for rr in range(2):
    for j in range(4): unpack(16 + 4*rr + j, 184 + 2*j, 185 + 2*j)
    for j in range(4): E(f"v_pk_mul_f32 {v(184+2*j,2)}, {v(184+2*j,2)}, {v(176+2*j,2)}")
    for j in range(4): E(f"v_cvt_pk_bf16_f32 v{184+j}, v{184+2*j}, v{185+2*j}")
    E(f"v_mov_b32 v{192+rr}, 0")
    for j in range(4):
        E(f"v_dot2_f32_bf16 v{192+rr}, v{184+j}, s53, v{192+rr}")
nop(3)
for dpp in ("row_shr:1 row_mask:0xf", "row_shr:2 row_mask:0xf", "row_shr:4 row_mask:0xf", "row_shr:8 row_mask:0xf", "row_bcast:15 row_mask:0xa", "row_bcast:31 row_mask:0xc"):
    for rr in range(2): E(f"v_add_f32_dpp v{192+rr}, v{192+rr}, v{192+rr} {dpp} bank_mask:0xf")
    nop(1)
E("v_cvt_pk_bf16_f32 v194, v192, v193"); unpack(194, 192, 193)
for rr in range(2): E(f"v_mul_f32 v{192+rr}, s51, v{192+rr}")
for rr in range(2): E(f"v_exp_f32 v{192+rr}, -v{192+rr}")
nop(1)
for rr in range(2): E(f"v_add_f32 v{192+rr}, 1.0, v{192+rr}")
for rr in range(2): E(f"v_rcp_f32 v{192+rr}, v{192+rr}")
nop(1)
E("v_cvt_pk_bf16_f32 v194, v192, v193")
E("s_lshl_b32 s54, s2, 4"); E("s_lshl_b32 s55, s3, 2"); E("s_add_u32 s54, s54, s55"); E("v_mov_b32 v195, s54")
E("s_mov_b64 s[56:57], exec"); E("s_mov_b32 s58, 0"); E("s_mov_b32 s59, 0x80000000"); E("s_mov_b64 exec, s[58:59]")
E("buffer_store_dword v194, v195, s[12:15], 0 offen sc1")
E("s_mov_b64 exec, s[56:57]")
basepow(W1, 1, False); basepow(W128, 128, False)
def readH():
    for ks in range(8): E(f"ds_read_b128 {v(HF+4*ks,4)}, v{VER} offset:{64*ks}")
mf = []
def mfmaH(tile, ks):
    c = "0" if ks == 0 else v(DT+4*tile, 4)
    E(f"v_mfma_f32_16x16x32_bf16 {v(DT+4*tile,4)}, {v(HF+4*ks,4)}, {v(LF+4*ks,4)}, {c}")
putrow(Q, 0)
cmul2(R, Q, W1); putrow(R, 1)
for e in range(2, 8): cmul2(R, R, W1); putrow(R, e)
cmul2(Q, Q, W128); putrow(Q, 8)
cmul2(R, Q, W1); putrow(R, 9)
for e in range(2, 8): cmul2(R, R, W1); putrow(R, 8 + e)
readH()
E("s_waitcnt vmcnt(0)")
E(f"v_mov_b32 v196, {CNT}"); E("v_mov_b32 v197, 1")
E("s_mov_b64 exec, 1"); E("ds_add_rtn_u32 v198, v196, v197"); E("s_mov_b64 exec, s[56:57]")
cmul2(W2, W1, W1)
steps = []
rows1 = []
for i in range(2):
    rows1.append(('q', 4*i))
    for e in range(1, 4): rows1.append(('r2', 4*i + e, e == 1))
rows1.append(('w4',))
for i in range(4):
    rows1.append(('q', 8 + 2*i)); rows1.append(('r4', 9 + 2*i))
nw = 0; ks = 0
for it in rows1:
    if it[0] == 'q': cmul2(Q, Q, W128); putrow(Q, it[1]); nw += 1
    elif it[0] == 'r2': cmul2(R, Q if it[2] else R, W2); putrow(R, it[1]); nw += 1
    elif it[0] == 'w4': cmul2(W2, W2, W2)
    elif it[0] == 'r4': cmul2(R, Q, W2); putrow(R, it[1]); nw += 1
    if nw == 4 and ks == 0:
        E(f"s_waitcnt lgkmcnt({nw})")
        E("v_readfirstlane_b32 s60, v198")
        E("s_cmp_eq_u32 s60, 3"); E("s_cbranch_scc0 L_noflag")
        E("v_mov_b32 v196, s2"); E("s_mov_b64 exec, 1")
        E("buffer_store_byte v197, v196, s[16:19], 0 offen sc1")
        E("s_mov_b64 exec, s[56:57]")
        Lb("L_noflag")
    if nw >= 4 and ks < 8: mfmaH(0, ks); ks += 1
assert ks == 8
readH()
nw = 0; ks = 0
for i in range(9):
    cmul2(Q, Q, W128); putrow(Q, i); nw += 1
    if nw == 3: E(f"s_waitcnt lgkmcnt({nw})")
    if nw >= 3:
        for _ in range(2):
            if ks < 8: mfmaH(1, ks); ks += 1
assert ks == 8
readH()
E("v_lshrrev_b32 v40, 1, v33"); E("v_lshl_add_u32 v40, v40, 4, v32"); E("v_sub_u32 v40, 255, v40"); E("v_lshlrev_b32 v40, 4, v40")
E("v_and_b32 v41, 1, v33"); E("v_xor_b32 v41, 1, v41"); E("v_lshl_add_u32 v40, v41, 3, v40"); E("v_add_u32 v40, s45, v40")
E(f"v_cvt_pk_bf16_f32 v42, v{DT+3}, v{DT+2}"); E(f"v_cvt_pk_bf16_f32 v43, v{DT+1}, v{DT}")
E("ds_write_b64 v40, v[42:43]")
E("s_mov_b32 s62, -1"); E("s_mov_b32 s63, 0")
E("v_lshl_add_u32 v44, v33, 4, v32"); E("v_add_u32 v44, 32, v44"); E("v_lshl_add_u32 v45, v33, 5, v32")
E("v_cndmask_b32 v44, v45, v44, s[62:63]")
E("v_lshlrev_b32 v45, 2, v44"); E("v_add_u32 v45, s46, v45")
E("v_sub_u32 v46, 255, v44"); E("v_lshlrev_b32 v46, 4, v46"); E("v_add_u32 v46, s45, v46")
E("v_lshl_add_u32 v47, v33, 6, v32"); E("v_lshlrev_b32 v47, 2, v47"); E("v_add_u32 v47, s46, v47")
E("v_lshlrev_b32 v48, 2, v0"); E("v_add_u32 v48, s46, v48")
E("v_sub_u32 v49, 63, v0"); E("v_lshlrev_b32 v49, 4, v49"); E("v_add_u32 v49, s45, v49")
X = DT + 4
E(f"v_cvt_pk_bf16_f32 v55, v{X}, v{X}")
E(f"v_cvt_pk_bf16_f32 v59, v{X+2}, v{X+2}")
E(f"v_cndmask_b32 v60, v{X+1}, v{X+2}, s[62:63]")
E(f"v_cndmask_b32 v61, v{X}, v{X+1}, s[62:63]")
E("v_cvt_pk_bf16_f32 v53, v60, v60"); E("v_cvt_pk_bf16_f32 v54, v60, v61")
E(f"v_cvt_pk_bf16_f32 v57, v{X+3}, v{X+3}"); E(f"v_cvt_pk_bf16_f32 v58, v{X+3}, v{X+2}")
E("s_waitcnt lgkmcnt(1)")
for ks in range(8): mfmaH(2, ks)
E("ds_write_b32 v45, v55")
E("s_mov_b64 exec, s[58:59]"); E("s_mov_b32 exec_hi, -1")
E("ds_write_b32 v45, v59 offset:64")
E("s_mov_b64 exec, s[56:57]")
nop(6)
for i in range(4): E(f"v_cvt_pk_bf16_f32 v{62+i}, v{DT+8+i}, v{DT+8+i}")
for i in range(4): E(f"ds_write_b32 v47, v{62+i} offset:{512+64*i}")
E("s_waitcnt lgkmcnt(0)")
E("ds_read_b32 v52, v45 offset:4"); E("ds_read_b32 v56, v45 offset:68")
E("ds_read2_b32 v[66:67], v48 offset0:128 offset1:129"); E("ds_read2_b32 v[74:75], v48 offset0:192 offset1:193")
E("v_and_b32 v60, 1, v0"); E("v_cmp_eq_u32 vcc, 1, v60"); E("v_mov_b32 v61, 0x07060100"); E("v_mov_b32 v60, 0x03020100")
E("v_cndmask_b32 v60, v61, v60, vcc")
E("v_mov_b32 v61, 0x03020100"); E("v_mov_b32 v62, 0x07060100"); E("v_cndmask_b32 v61, v61, v62, s[62:63]")
E("s_waitcnt lgkmcnt(2)")
E("v_perm_b32 v52, v57, v52, v61")
E("ds_write_b128 v46, v[52:55]")
E("s_mov_b64 exec, s[58:59]"); E("s_mov_b32 exec_hi, -1")
E("v_subrev_u32 v46, 256, v46")
E("ds_write_b128 v46, v[56:59]")
E("s_mov_b64 exec, s[56:57]")
E("s_waitcnt lgkmcnt(2)")
for (b, o) in ((64, 1024), (72, 0)):
    E(f"v_mov_b32 v{b}, v{b+3}"); E(f"v_perm_b32 v{b+1}, v{b+2}, v{b+3}, v60"); E(f"v_mov_b32 v{b+3}, v{b+2}")
    E(f"ds_write_b128 v49, {v(b,4)} offset:{o}")
E("v_lshlrev_b32 v5, 5, v32"); E("v_lshl_add_u32 v5, v33, 3, v5"); E(f"s_mul_i32 s61, s3, {YCB}"); E(f"s_add_u32 s61, s61, {Y0}"); E("v_add_u32 v5, s61, v5")
E("v_lshlrev_b32 v10, 2, v0")
E("s_lshl_b32 s61, s3, 10"); E("v_lshlrev_b32 v11, 4, v0"); E("v_add_u32 v11, s61, v11"); E(f"v_add_u32 v12, {G0}, v11")
stamp(2)
ACC = 32; POOL = 64; NSLOT = int(OPT.get('nslot', 28)); MAXFL = int(OPT.get('maxfl', 10))
E("s_waitcnt lgkmcnt(0)")
class Conv:
    def __init__(s):
        s.q = []
        s.slot = {}
        s.free = list(range(NSLOT))
    def ds(s, txt, id=None): E(txt); s.q.append(id)
    def need(s, f):
        if f in s.q:
            n = len(s.q) - 1 - s.q.index(f)
            assert n <= 15
            E(f"s_waitcnt lgkmcnt({n})"); s.q = s.q[len(s.q) - n:]
    def load(s, f):
        sl = s.free.pop(0); s.slot[f] = sl
        if f[0] == 'A': s.ds(f"ds_read_b128 {v(POOL+4*sl,4)}, v{VUA} offset:{512*f[1]+64*f[2]}", f)
        else: s.ds(f"ds_read_b128 {v(POOL+4*sl,4)}, v{VKB} offset:{512*(7-f[1])+64*f[2]}", f)
cv = Conv()
started = set()
plan = []
for ph, al in enumerate(PHASES):
    ms = []
    for c in range(8):
        prs = [(a, P) for a in al for P in range(a, 8)]
        prs.sort(key=lambda x: (x[1] - x[0], x[0]))
        if c == 7: prs.sort(key=lambda x: (0 if x[1] in al else 1, x[1] - x[0], x[0]))
        for (a, P) in prs: ms.append((('A', a, c, ph), ('B', P - a, c, ph), P))
    plan.append(ms)
def loadorder(ms):
    o = []
    for m in ms:
        for f in m[:2]:
            if f not in o: o.append(f)
    return o
pre = set()
for ph, ms in enumerate(plan):
    lo = [f for f in loadorder(ms) if f not in pre]
    last = {}
    for i, m in enumerate(ms):
        last[m[0]] = i; last[m[1]] = i
    E("s_barrier")
    stamp(3 + ph)
    if ph == 0: E("buffer_load_dword v13, v10, s[16:19], 0 offen sc1")
    while lo and cv.free and len(cv.q) < MAXFL: cv.load(lo.pop(0))
    for i, m in enumerate(ms):
        while m[0] not in cv.slot or m[1] not in cv.slot: cv.load(lo.pop(0))
        cv.need(m[0]); cv.need(m[1])
        P = m[2]; c = v(ACC + 4*P, 4) if P in started else "0"; started.add(P)
        E(f"v_mfma_f32_16x16x32_bf16 {v(ACC+4*P,4)}, {v(POOL+4*cv.slot[m[0]],4)}, {v(POOL+4*cv.slot[m[1]],4)}, {c}")
        for f in m[:2]:
            if last[f] == i: cv.free.append(cv.slot.pop(f))
        k = 0
        while lo and cv.free and len(cv.q) < MAXFL and k < 2: cv.load(lo.pop(0)); k += 1
        if ph == 0 and i == (len(ms) * 5) // 8:
            E("s_mov_b32 s64, 0"); E("s_mov_b32 s65, 0x01010101")
            Lb("L_poll")
            E("s_waitcnt vmcnt(0)"); E("v_cmp_ne_u32 vcc, s65, v13"); E("s_cbranch_vccz L_pollok")
            E("s_add_u32 s64, s64, 1"); E("s_cmp_gt_u32 s64, 200000"); E("s_cbranch_scc1 L_pollok")
            E("s_sleep 2"); E("buffer_load_dword v13, v10, s[16:19], 0 offen sc1"); E("s_branch L_poll")
            Lb("L_pollok")
            E("buffer_load_dwordx4 v[16:19], v11, s[12:15], 0 offen sc1")
    if ph + 1 < NPH:
        for f in loadorder(plan[ph + 1]):
            if f[0] == 'B' and f[2] == 0 and cv.free and len(cv.q) < 8: cv.load(f); pre.add(f)
    lastw = max(i for i, m in enumerate(ms) if m[2] in PHASES[ph])
    d = len(ms) - 1 - lastw
    nop(max(0, 8 - d))
    for j, P in enumerate(PHASES[ph]):
        t = 20 + 2 * (j % 4)
        E(f"v_cvt_pk_bf16_f32 v{t}, v{ACC+4*P}, v{ACC+4*P+1}"); E(f"v_cvt_pk_bf16_f32 v{t+1}, v{ACC+4*P+2}, v{ACC+4*P+3}")
        cv.ds(f"ds_write_b64 v{VYW}, {v(t,2)} offset:{(ph&1)*YBUF + 512*j}")
    if ph == 0:
        E("s_waitcnt vmcnt(0)"); cv.ds("ds_write_b128 v12, v[16:19]")
    E("s_waitcnt lgkmcnt(0)"); cv.q = []
E("s_barrier")
stamp(3 + NPH)
E("s_endpgm")

Lb("L_helper")
E("s_sub_u32 s23, s3, 4")
E("s_load_dwordx2 s[28:29], s[0:1], 48"); E("s_load_dwordx2 s[30:31], s[0:1], 120")
E("s_lshl_b32 s24, s21, 6"); E("s_lshl_b32 s25, s23, 4"); E("s_add_u32 s24, s24, s25")
E("v_and_b32 v1, 15, v0"); E("v_add_u32 v1, s24, v1"); E("v_lshlrev_b32 v1, 10, v1"); E("v_add_u32 v1, s22, v1")
RPH = [256 * len(al) for al in PHASES]
R0 = [256 * al[0] for al in PHASES]
E("v_lshlrev_b32 v2, 11, v0"); E("v_add_u32 v2, s22, v2")
E("v_and_b32 v3, 7, v0"); E("v_lshlrev_b32 v3, 10, v3"); E("v_add_u32 v3, s22, v3"); E("v_subrev_u32 v3, 0x2000, v3")
E("s_waitcnt lgkmcnt(0)")
stamp(0)
E("s_load_dword s32, s[28:29], s22"); E("s_load_dword s33, s[30:31], s22")
vmq = []
E("buffer_load_dword v1, v1, s[4:7], 0 offen"); vmq.append('pf')
UR = 16
E("s_lshl_b32 s34, s23, 17")
NU = 4
for k in range(NU):
    E(f"s_add_u32 s{36+k}, s34, {k * 512 * 1024}")
for k in range(NU):
    E(f"v_add_u32 v4, s{36+k}, v3")
    E(f"buffer_load_dword v{UR+3*k}, v4, s[4:7], 0 offen"); vmq.append(('u', k))
    E(f"buffer_load_dword v{UR+3*k+1}, v2, s[4:7], s{36+k} offen"); vmq.append(('u', k))
    E(f"buffer_load_dword v{UR+3*k+2}, v2, s[4:7], s{36+k} offen offset:1024"); vmq.append(('u', k))
def vmwait(tag):
    idx = max(i for i, t in enumerate(vmq) if t == tag)
    n = len(vmq) - 1 - idx
    E(f"s_waitcnt vmcnt({n})"); del vmq[:idx + 1]
for i in range(4): E(f"v_mov_b32 v{40+i}, 0")
E("v_and_b32 v5, 7, v0"); E("v_lshlrev_b32 v6, 2, v5"); E(f"s_mov_b32 s47, {offc}"); E("v_lshrrev_b32 v6, v6, s47"); E("v_and_b32 v6, 15, v6")
E("v_lshlrev_b32 v6, 4, v6"); E(f"v_mul_u32_u24 v5, {CS}, v5"); E("v_add_u32 v5, v5, v6")
E("v_bfe_u32 v6, v0, 3, 1"); E(f"v_mul_u32_u24 v6, {UCH}, v6"); E("v_add_u32 v5, v5, v6")
E("ds_write_b128 v5, v[40:43]")
E("s_waitcnt lgkmcnt(0)"); E("s_barrier")
RAW = U0 + 16 * (OFF[0] + 2)
E("s_lshl_b32 s35, s23, 8")
E("v_lshlrev_b32 v5, 2, v0"); E("v_add_u32 v5, s35, v5"); E(f"v_add_u32 v5, {RAW}, v5")
E("v_and_b32 v6, 7, v0"); E("v_lshlrev_b32 v6, 1, v6"); E("v_add_u32 v6, s35, v6"); E(f"v_add_u32 v6, {RAW-16}, v6")
E("v_and_b32 v7, 15, v0"); E("v_lshlrev_b32 v7, 4, v7"); E("v_add_u32 v7, s35, v7")
E("v_lshrrev_b32 v8, 5, v0"); E(f"v_mul_u32_u24 v8, {UCH}, v8"); E("v_add_u32 v7, v7, v8")
E("v_bfe_u32 v8, v0, 4, 1")
E("v_lshl_add_u32 v9, v8, 3, v7"); E(f"v_add_u32 v9, {RAW-16}, v9")
E("v_cmp_eq_u32 vcc, 1, v8")
for j in range(4):
    E(f"v_mov_b32 v{10+j}, {U0 + j*CS + 16*(OFF[j]+1)}"); E(f"v_mov_b32 v14, {U0 + (4+j)*CS + 16*(OFF[4+j]+1)}")
    E(f"v_cndmask_b32 v{10+j}, v{10+j}, v14, vcc"); E(f"v_add_u32 v{10+j}, v{10+j}, v7")
E("s_mov_b32 s40, 0x05040100"); E("s_mov_b32 s41, 0x07060302")
E("s_lshl_b32 s42, s23, 8"); E("v_lshlrev_b32 v14, 2, v0"); E("v_add_u32 v14, s42, v14"); E(f"v_add_u32 v15, {G0}, v14"); E(f"v_add_u32 v14, {Y0}, v14")
E("s_lshl_b32 s44, s32, 16"); E("s_and_b32 s45, s32, 0xffff0000"); E("s_lshl_b32 s46, s33, 16"); E("s_and_b32 s47, s33, 0xffff0000")
def copies(k):
    vmwait(('u', k))
    x, r0, r1 = UR + 3*k, UR + 3*k + 1, UR + 3*k + 2
    E(f"v_perm_b32 v40, v{r1}, v{r0}, s40"); E(f"v_perm_b32 v41, v{r1}, v{r0}, s41")
    E(f"ds_write_b32 v5, v40 offset:{1024*k}"); E(f"ds_write_b32 v5, v41 offset:{1024*k+UCH}")
    E(f"ds_write_b16 v6, v{x} offset:{1024*k}"); E(f"ds_write_b16_d16_hi v6, v{x} offset:{1024*k+UCH}")
    for j in range(3): E(f"ds_read_b64 {v(44+2*j,2)}, v9 offset:{1024*k+8*j}")
    E("s_waitcnt lgkmcnt(0)")
    E(f"ds_write_b128 v10, v[44:47] offset:{1024*k}")
    for i in range(4): E(f"v_alignbit_b32 v{52+i}, v{45+i}, v{44+i}, 16")
    E(f"ds_write_b128 v11, v[52:55] offset:{1024*k}")
    for i in range(4): E(f"v_mov_b32 v{56+i}, v{45+i}")
    E(f"ds_write_b128 v12, v[56:59] offset:{1024*k}")
    for i in range(4): E(f"v_alignbit_b32 v{60+i}, v{46+i}, v{45+i}, 16")
    E(f"ds_write_b128 v13, v[60:63] offset:{1024*k}")
def rnd(a, t):
    E(f"v_cvt_pk_bf16_f32 v{t}, v{a}, v{a+1}"); E(f"v_cvt_pk_bf16_f32 v{t+1}, v{a+2}, v{a+3}")
    unpack(t, a, a+1); unpack(t+1, a+2, a+3)
def epilogue(k, ph, j):
    yb = (ph & 1) * YBUF + 1024 * j
    for cb in range(4): E(f"ds_read_b32 v{44+cb}, v14 offset:{yb + cb*YCB}")
    E(f"ds_read_b32 v48, v15 offset:{1024*k}")
    r0, r1 = UR + 3*k + 1, UR + 3*k + 2
    unpack(r0, 64, 65); unpack(r1, 66, 67)
    E("v_pk_mul_f32 v[68:69], v[64:65], s[44:45]"); E("v_pk_mul_f32 v[70:71], v[66:67], s[44:45]")
    E("v_pk_mul_f32 v[72:73], v[64:65], s[46:47]"); E("v_pk_mul_f32 v[74:75], v[66:67], s[46:47]")
    rnd(68, 50); rnd(72, 50)
    E("s_waitcnt lgkmcnt(0)")
    unpack(44, 76, 78); unpack(45, 77, 79); unpack(46, 80, 82); unpack(47, 81, 83)
    unpack(48, 84, 86)
    E("v_sub_f32 v88, 1.0, v84"); E("v_sub_f32 v90, 1.0, v86"); E("v_cvt_pk_bf16_f32 v50, v88, v90"); unpack(50, 88, 90)
    E("v_pk_add_f32 v[68:69], v[68:69], v[76:77]"); E("v_pk_add_f32 v[70:71], v[70:71], v[78:79]")
    E("v_pk_add_f32 v[72:73], v[72:73], v[80:81]"); E("v_pk_add_f32 v[74:75], v[74:75], v[82:83]")
    rnd(68, 50); rnd(72, 50)
    E("v_pk_mul_f32 v[68:69], v[68:69], v[84:85] op_sel_hi:[1,0]"); E("v_pk_mul_f32 v[70:71], v[70:71], v[86:87] op_sel_hi:[1,0]")
    E("v_pk_mul_f32 v[72:73], v[72:73], v[88:89] op_sel_hi:[1,0]"); E("v_pk_mul_f32 v[74:75], v[74:75], v[90:91] op_sel_hi:[1,0]")
    rnd(68, 50); rnd(72, 50)
    E("v_pk_add_f32 v[68:69], v[68:69], v[72:73]"); E("v_pk_add_f32 v[70:71], v[70:71], v[74:75]")
    o = 92 + 2 * k
    E(f"v_cvt_pk_bf16_f32 v{o}, v68, v69"); E(f"v_cvt_pk_bf16_f32 v{o+1}, v70, v71")
    E(f"buffer_store_dword v{o}, v2, s[8:11], s{36+k} offen"); E(f"buffer_store_dword v{o+1}, v2, s[8:11], s{36+k} offen offset:1024")
    vmq.extend(['st', 'st'])
units = [[a // 2 for a in al[::2]] for al in PHASES]
for ph in range(NPH + 1):
    if ph >= 2:
        for j, k in enumerate(units[ph - 2]): epilogue(k, ph - 2, j)
    if ph < NPH:
        for k in units[ph]: copies(k)
    E("s_waitcnt lgkmcnt(0)")
    stamp(1 + ph)
    E("s_barrier")
for j, k in enumerate(units[NPH - 1]): epilogue(k, NPH - 1, j)
stamp(2 + NPH)
if STAMP:
    E("s_waitcnt vmcnt(0)"); stamp(3 + NPH)
Lb("L_end")
E("s_endpgm")

import os; sys.path.insert(0, os.path.dirname(__file__)); import hz
out, ncnt = hz.fix(out, int(OPT.get('hzv', 0))); print('hazard nops', ncnt)
hdr = open('cdna_kernels/%s.s.ref' % NAME).read().split('\n')
hdr = [l for l in hdr if l.startswith(';') and '@launch' not in l and l.startswith('; ') ]
txt = '\n'.join(hdr[:22]) + f"\n; @launch grid=(256,1,1) block=(512,1,1) lds={LDS}\n"
txt += f""".amdgcn_target "amdgcn-amd-amdhsa--gfx950"
.text
.globl {NAME}_kernel
.p2align 8
.type {NAME}_kernel,@function
{NAME}_kernel:
""" + '\n'.join(out) + f"""
.section .rodata,"a"
.p2align 6
.amdhsa_kernel {NAME}_kernel
  .amdhsa_next_free_vgpr 256
  .amdhsa_next_free_sgpr 102
  .amdhsa_accum_offset 256
  .amdhsa_group_segment_fixed_size 0
  .amdhsa_kernarg_size 160
  .amdhsa_user_sgpr_count 2
  .amdhsa_user_sgpr_kernarg_segment_ptr 1
  .amdhsa_system_sgpr_workgroup_id_x 1
.end_amdhsa_kernel
"""
open(sys.argv[1], 'w').write(txt)
print("LDS", LDS, "lines", len(out))
```

```python
import sys, math, struct
NAME = "gated_mix__ssm_conv_s4d__ssm_conv_s4__prompt"
OPT = dict(a.split('=') for a in sys.argv[2:] if '=' in a)
STAMP = int(OPT.get('stamp', 0))
PHASES = eval(OPT.get('phases', '[[0,1],[2,3],[4,5],[6,7]]'))
NPH = len(PHASES)
out = []
def E(s): out.append("    " + s)
def Lb(s): out.append(s + ":")
def f2u(x): return struct.unpack('<I', struct.pack('<f', x))[0]
def v(i, n=1): return f"v{i}" if n == 1 else f"v[{i}:{i+n-1}]"
def s(i, n=1): return f"s{i}" if n == 1 else f"s[{i}:{i+n-1}]"
def nop(n):
    if n > 0: E(f"s_nop {n-1}")
OFF = [12, 3, 7, 6, 10, 12, 1, 0]
CS = 272 * 16
UCH = 8 * CS
U0 = 0
KR0 = 2 * UCH; KRS = 288 * 16
E0 = KR0 + 4 * KRS; ES = 544; EW = 16 * ES
Y0 = E0
YCB = 2048; YBUF = 4 * YCB
G0 = E0 + 2 * YBUF
CNT = E0 + 4 * EW
LDS = CNT + 16
offc = 0
for i, o in enumerate(OFF): offc |= o << (4 * i)
def stamp(k, real=None):
    if not STAMP: return
    E("s_memtime s[90:91]")
    if real is not None: E("s_memrealtime s[94:95]")
    E("s_waitcnt lgkmcnt(0)")
    E("v_mov_b32 v250, s90"); E(f"v_mov_b32 v251, s92")
    E(f"buffer_store_dword v250, v251, s[12:15], 0 offen offset:{4*k}")
    if real is not None:
        E("v_mov_b32 v252, s94"); E(f"buffer_store_dword v252, v251, s[12:15], 0 offen offset:{4*real}")
E("s_cmp_ge_u32 s2, 256"); E("s_cbranch_scc1 L_end")
E("s_load_dwordx2 s[4:5], s[0:1], 0")
E("s_load_dwordx2 s[8:9], s[0:1], 136")
E("s_load_dwordx2 s[16:17], s[0:1], 144")
E("s_load_dwordx2 s[12:13], s[0:1], 152")
E("v_lshrrev_b32 v1, 6, v0"); E("v_and_b32 v0, 63, v0")
E("v_readfirstlane_b32 s3, v1")
E("s_and_b32 s20, s2, 7"); E("s_lshr_b32 s21, s2, 3")
E("s_lshl_b32 s20, s20, 5"); E("s_add_u32 s20, s20, s21")
E("s_lshl_b32 s22, s20, 2")
E("s_mov_b32 s6, 0x200000"); E("s_mov_b32 s7, 0x20000")
E("s_mov_b32 s10, 0x200000"); E("s_mov_b32 s11, 0x20000")
E("s_mov_b32 s14, 0x200000"); E("s_mov_b32 s15, 0x20000")
E("s_mov_b32 s18, 256"); E("s_mov_b32 s19, 0x20000")
if STAMP:
    E("s_lshl_b32 s92, s2, 3"); E("s_add_u32 s92, s92, s3"); E("s_lshl_b32 s92, s92, 6"); E("s_add_u32 s92, s92, 0x100000")
E("s_cmp_ge_u32 s3, 4"); E("s_cbranch_scc1 L_helper")

E("s_and_b32 s23, s3, 1"); E("s_lshr_b32 s24, s3, 1")
E("s_cmp_eq_u32 s24, 0"); E("s_cbranch_scc0 L_ptrB")
E("s_load_dwordx4 s[28:31], s[0:1], 8")
E("s_load_dwordx4 s[36:39], s[0:1], 24")
E("s_load_dwordx2 s[40:41], s[0:1], 40")
E("s_load_dwordx4 s[32:35], s[0:1], 8")
E("s_branch L_ptrdone")
Lb("L_ptrB")
E("s_load_dwordx4 s[28:31], s[0:1], 64")
E("s_load_dwordx4 s[32:35], s[0:1], 80")
E("s_load_dwordx4 s[36:39], s[0:1], 96")
E("s_load_dwordx2 s[40:41], s[0:1], 112")
Lb("L_ptrdone")
E("s_load_dwordx2 s[42:43], s[0:1], 128")
E("s_lshl_b32 s25, s20, 1"); E("s_add_u32 s25, s25, s23"); E("s_lshl_b32 s25, s25, 8")
E("v_lshlrev_b32 v2, 2, v0"); E("v_add_u32 v2, s25, v2")
E("s_lshl_b32 s26, s2, 3"); E("s_lshl_b32 s27, s3, 1"); E("s_add_u32 s26, s26, s27"); E("s_lshl_b32 s26, s26, 10")
E("v_lshlrev_b32 v3, 4, v0"); E("v_add_u32 v4, s26, v3")
E("s_waitcnt lgkmcnt(0)")
stamp(0, 15)
E("s_load_dword s44, s[40:41], s22")
E("global_load_dword v10, v2, s[28:29]"); E("global_load_dword v11, v2, s[30:31]")
E("global_load_dword v12, v2, s[36:37]"); E("global_load_dword v13, v2, s[38:39]")
E("global_load_dword v14, v2, s[32:33]"); E("global_load_dword v15, v2, s[34:35]")
E("buffer_load_dwordx4 v[16:19], v4, s[4:7], 0 offen")
E("buffer_load_dwordx4 v[20:23], v4, s[4:7], 0 offen offset:1024")
E("global_load_dwordx4 v[24:27], v3, s[42:43]")
E("s_mul_i32 s45, s3, %d" % KRS); E("s_add_u32 s45, s45, %d" % KR0)
E("s_mul_i32 s46, s3, %d" % EW); E("s_add_u32 s46, s46, %d" % E0)
for i in range(4): E(f"v_mov_b32 v{28+i}, 0")
E("v_and_b32 v5, 31, v0"); E("v_lshlrev_b32 v5, 4, v5"); E("v_add_u32 v5, s45, v5")
E("ds_write_b128 v5, v[28:31] offset:4096")
E(f"v_mov_b32 v5, {CNT}"); E("ds_write_b32 v5, v28")
E("s_waitcnt lgkmcnt(0)"); E("s_barrier")
VEW, VER, VKB, VUA, VYW = 6, 7, 8, 9, 5
E("v_lshlrev_b32 v6, 3, v0"); E("v_add_u32 v6, s46, v6")
E("v_and_b32 v32, 15, v0"); E("v_lshrrev_b32 v33, 4, v0")
E(f"v_mul_u32_u24 v7, {ES}, v32"); E("v_lshl_add_u32 v7, v33, 4, v7"); E("v_add_u32 v7, s46, v7")
E("v_lshlrev_b32 v8, 1, v32"); E("v_sub_u32 v8, v33, v8"); E("v_add_u32 v8, 30, v8"); E("v_lshlrev_b32 v8, 4, v8"); E("v_add_u32 v8, s45, v8")
E("v_add_u32 v34, 1, v32"); E("v_and_b32 v35, 7, v34"); E("v_lshrrev_b32 v34, 3, v34"); E("v_add_u32 v34, v34, v33")
E("v_lshlrev_b32 v36, 2, v35"); E(f"s_mov_b32 s47, {offc}"); E("v_lshrrev_b32 v36, v36, s47"); E("v_and_b32 v36, 15, v36")
E("v_add_u32 v34, v34, v36"); E("v_lshlrev_b32 v34, 4, v34"); E(f"v_mul_u32_u24 v9, {CS}, v35"); E("v_add_u32 v9, v9, v34")
E(f"s_mul_i32 s48, s23, {UCH}"); E("v_add_u32 v9, s48, v9")
E("s_cmp_eq_u32 s23, 0"); E("s_lshl_b32 s49, s44, 16"); E("s_and_b32 s50, s44, 0xffff0000")
E("s_cmp_eq_u32 s23, 0"); E("s_cselect_b32 s49, s49, s50")
L2E = f2u(1.4426950408889634);
E(f"s_mov_b32 s51, {L2E}"); E("v_mov_b32 v37, s49"); E("v_mul_f32 v37, s51, v37"); E("v_exp_f32 v37, v37"); nop(1)
E("v_cvt_pk_bf16_f32 v37, v37, v37"); E("v_and_b32 v37, 0xffff0000, v37")
E("s_waitcnt vmcnt(3)")
stamp(1)
def unpack(src, lo, hi):
    E(f"v_lshlrev_b32 v{lo}, 16, v{src}"); E(f"v_and_b32 v{hi}, 0xffff0000, v{src}")
unpack(10, 40, 41); unpack(11, 42, 43)
unpack(12, 44, 46); unpack(13, 45, 47)
E("s_cmp_eq_u32 s24, 0"); E("s_cbranch_scc0 L_parB")
for r in (40, 41): E(f"v_mul_f32 v{r}, s51, v{r}")
for r in (40, 41): E(f"v_exp_f32 v{r}, v{r}")
nop(1)
E("v_cvt_pk_bf16_f32 v48, v40, v41"); unpack(48, 40, 41)
for r in (40, 41): E(f"v_xor_b32 v{r}, 0x80000000, v{r}")
E("v_add_f32 v48, v37, v37"); E("v_mov_b32 v49, 0"); E("v_mov_b32 v50, v48"); E("v_mov_b32 v51, 0")
E("s_branch L_pardone")
Lb("L_parB")
unpack(14, 48, 50); unpack(15, 49, 51)
for r in (48, 49, 50, 51): E(f"v_mul_f32 v{r}, v37, v{r}")
Lb("L_pardone")
def cmul(d, x, m, t):
    E(f"v_pk_mul_f32 {v(t,2)}, {v(x,2)}, {v(m,2)} op_sel:[0,0] op_sel_hi:[0,1]")
    E(f"v_pk_fma_f32 {v(d,2)}, {v(x,2)}, {v(m,2)}, {v(t,2)} op_sel:[1,1,0] op_sel_hi:[1,0,1] neg_lo:[0,1,0]")
def cmul2(d, x, m, t=(76, 78)):
    for k in (0, 1): E(f"v_pk_mul_f32 {v(t[k],2)}, {v(x+2*k,2)}, {v(m+2*k,2)} op_sel:[0,0] op_sel_hi:[0,1]")
    for k in (0, 1): E(f"v_pk_fma_f32 {v(d+2*k,2)}, {v(x+2*k,2)}, {v(m+2*k,2)}, {v(t[k],2)} op_sel:[1,1,0] op_sel_hi:[1,0,1] neg_lo:[0,1,0]")
Q, W1, W8, W128, R, W2 = 52, 56, 60, 64, 68, 72
cmul2(Q, 44, 48)
E("v_mul_f32 v40, v37, v40"); E("v_mul_f32 v41, v37, v41"); E("v_mul_f32 v42, v37, v42"); E("v_mul_f32 v43, v37, v43")
E("v_mul_f32 v40, s51, v40"); E("v_mul_f32 v41, s51, v41")
E("v_mul_f32 v42, 0.15915494, v42"); E("v_mul_f32 v43, 0.15915494, v43")
def basepow(dst, t, conj):
    E(f"s_mov_b32 s52, {f2u(float(t))}")
    for k in (0, 1):
        E(f"v_mul_f32 v{44+k}, s52, v{40+k}"); E(f"v_mul_f32 v{46+k}, s52, v{42+k}")
    for k in (0, 1): E(f"v_fract_f32 v{46+k}, v{46+k}")
    for k in (0, 1): E(f"v_exp_f32 v{44+k}, v{44+k}")
    for k in (0, 1):
        E(f"v_cos_f32 v{dst+2*k}, v{46+k}"); E(f"v_sin_f32 v{dst+2*k+1}, v{46+k}")
    nop(1)
    for k in (0, 1):
        E(f"v_mul_f32 v{dst+2*k}, v{44+k}, v{dst+2*k}")
        E(f"v_mul_f32 v{dst+2*k+1}, {'-' if conj else ''}v{44+k}, v{dst+2*k+1}")
basepow(W8, 8, True)
pk = [80]
def putrow(src, row):
    t = pk[0]; pk[0] = 80 + (pk[0] - 80 + 2) % 8
    E(f"v_cvt_pk_bf16_f32 v{t}, v{src}, v{src+1}"); E(f"v_cvt_pk_bf16_f32 v{t+1}, v{src+2}, v{src+3}")
    E(f"ds_write_b64 v{VEW}, {v(t,2)} offset:{row*ES}")
E("v_mov_b32 v80, 0x3f80"); E("v_mov_b32 v81, 0x3f80"); E(f"ds_write_b64 v{VEW}, v[80:81]"); pk[0] = 82
putrow(W8, 1)
cmul2(R, W8, W8); putrow(R, 2)
for k in range(3, 16):
    cmul2(R, R, W8); putrow(R, k)
LF, HF, DT = 96, 128, 160
for ks in range(8): E(f"ds_read_b128 {v(LF+4*ks,4)}, v{VER} offset:{64*ks}")
E("s_waitcnt vmcnt(0)")
ONE2 = 0x3f803f80
E(f"s_mov_b32 s53, {ONE2}")
for j in range(4): unpack(24 + j, 176 + 2*j, 177 + 2*j)
for rr in range(2):
    for j in range(4): unpack(16 + 4*rr + j, 184 + 2*j, 185 + 2*j)
    for j in range(4): E(f"v_pk_mul_f32 {v(184+2*j,2)}, {v(184+2*j,2)}, {v(176+2*j,2)}")
    for j in range(4): E(f"v_cvt_pk_bf16_f32 v{184+j}, v{184+2*j}, v{185+2*j}")
    E(f"v_mov_b32 v{192+rr}, 0")
    for j in range(4):
        E(f"v_dot2_f32_bf16 v{192+rr}, v{184+j}, s53, v{192+rr}")
nop(3)
for dpp in ("row_shr:1 row_mask:0xf", "row_shr:2 row_mask:0xf", "row_shr:4 row_mask:0xf", "row_shr:8 row_mask:0xf", "row_bcast:15 row_mask:0xa", "row_bcast:31 row_mask:0xc"):
    for rr in range(2): E(f"v_add_f32_dpp v{192+rr}, v{192+rr}, v{192+rr} {dpp} bank_mask:0xf")
    nop(1)
E("v_cvt_pk_bf16_f32 v194, v192, v193"); unpack(194, 192, 193)
for rr in range(2): E(f"v_mul_f32 v{192+rr}, s51, v{192+rr}")
for rr in range(2): E(f"v_exp_f32 v{192+rr}, -v{192+rr}")
nop(1)
for rr in range(2): E(f"v_add_f32 v{192+rr}, 1.0, v{192+rr}")
for rr in range(2): E(f"v_rcp_f32 v{192+rr}, v{192+rr}")
nop(1)
E("v_cvt_pk_bf16_f32 v194, v192, v193")
E("s_lshl_b32 s54, s2, 4"); E("s_lshl_b32 s55, s3, 2"); E("s_add_u32 s54, s54, s55"); E("v_mov_b32 v195, s54")
E("s_mov_b64 s[56:57], exec"); E("s_mov_b32 s58, 0"); E("s_mov_b32 s59, 0x80000000"); E("s_mov_b64 exec, s[58:59]")
E("buffer_store_dword v194, v195, s[12:15], 0 offen sc1")
E("s_mov_b64 exec, s[56:57]")
basepow(W1, 1, False); basepow(W128, 128, False)
def readH():
    for ks in range(8): E(f"ds_read_b128 {v(HF+4*ks,4)}, v{VER} offset:{64*ks}")
mf = []
def mfmaH(tile, ks):
    c = "0" if ks == 0 else v(DT+4*tile, 4)
    E(f"v_mfma_f32_16x16x32_bf16 {v(DT+4*tile,4)}, {v(HF+4*ks,4)}, {v(LF+4*ks,4)}, {c}")
putrow(Q, 0)
cmul2(R, Q, W1); putrow(R, 1)
for e in range(2, 8): cmul2(R, R, W1); putrow(R, e)
cmul2(Q, Q, W128); putrow(Q, 8)
cmul2(R, Q, W1); putrow(R, 9)
for e in range(2, 8): cmul2(R, R, W1); putrow(R, 8 + e)
readH()
E("s_waitcnt vmcnt(0)")
E(f"v_mov_b32 v196, {CNT}"); E("v_mov_b32 v197, 1")
E("s_mov_b64 exec, 1"); E("ds_add_rtn_u32 v198, v196, v197"); E("s_mov_b64 exec, s[56:57]")
cmul2(W2, W1, W1)
steps = []
rows1 = []
for i in range(2):
    rows1.append(('q', 4*i))
    for e in range(1, 4): rows1.append(('r2', 4*i + e, e == 1))
rows1.append(('w4',))
for i in range(4):
    rows1.append(('q', 8 + 2*i)); rows1.append(('r4', 9 + 2*i))
nw = 0; ks = 0
for it in rows1:
    if it[0] == 'q': cmul2(Q, Q, W128); putrow(Q, it[1]); nw += 1
    elif it[0] == 'r2': cmul2(R, Q if it[2] else R, W2); putrow(R, it[1]); nw += 1
    elif it[0] == 'w4': cmul2(W2, W2, W2)
    elif it[0] == 'r4': cmul2(R, Q, W2); putrow(R, it[1]); nw += 1
    if nw == 4 and ks == 0:
        E(f"s_waitcnt lgkmcnt({nw})")
        E("v_readfirstlane_b32 s60, v198")
        E("s_cmp_eq_u32 s60, 3"); E("s_cbranch_scc0 L_noflag")
        E("v_mov_b32 v196, s2"); E("s_mov_b64 exec, 1")
        E("buffer_store_byte v197, v196, s[16:19], 0 offen sc1")
        E("s_mov_b64 exec, s[56:57]")
        Lb("L_noflag")
    if nw >= 4 and ks < 8: mfmaH(0, ks); ks += 1
assert ks == 8
readH()
nw = 0; ks = 0
for i in range(9):
    cmul2(Q, Q, W128); putrow(Q, i); nw += 1
    if nw == 3: E(f"s_waitcnt lgkmcnt({nw})")
    if nw >= 3:
        for _ in range(2):
            if ks < 8: mfmaH(1, ks); ks += 1
assert ks == 8
readH()
E("v_lshrrev_b32 v40, 1, v33"); E("v_lshl_add_u32 v40, v40, 4, v32"); E("v_sub_u32 v40, 255, v40"); E("v_lshlrev_b32 v40, 4, v40")
E("v_and_b32 v41, 1, v33"); E("v_xor_b32 v41, 1, v41"); E("v_lshl_add_u32 v40, v41, 3, v40"); E("v_add_u32 v40, s45, v40")
E(f"v_cvt_pk_bf16_f32 v42, v{DT+3}, v{DT+2}"); E(f"v_cvt_pk_bf16_f32 v43, v{DT+1}, v{DT}")
E("ds_write_b64 v40, v[42:43]")
E("s_mov_b32 s62, -1"); E("s_mov_b32 s63, 0")
E("v_lshl_add_u32 v44, v33, 4, v32"); E("v_add_u32 v44, 32, v44"); E("v_lshl_add_u32 v45, v33, 5, v32")
E("v_cndmask_b32 v44, v45, v44, s[62:63]")
E("v_lshlrev_b32 v45, 2, v44"); E("v_add_u32 v45, s46, v45")
E("v_sub_u32 v46, 255, v44"); E("v_lshlrev_b32 v46, 4, v46"); E("v_add_u32 v46, s45, v46")
E("v_lshl_add_u32 v47, v33, 6, v32"); E("v_lshlrev_b32 v47, 2, v47"); E("v_add_u32 v47, s46, v47")
E("v_lshlrev_b32 v48, 2, v0"); E("v_add_u32 v48, s46, v48")
E("v_sub_u32 v49, 63, v0"); E("v_lshlrev_b32 v49, 4, v49"); E("v_add_u32 v49, s45, v49")
X = DT + 4
E(f"v_cvt_pk_bf16_f32 v55, v{X}, v{X}")
E(f"v_cvt_pk_bf16_f32 v59, v{X+2}, v{X+2}")
E(f"v_cndmask_b32 v60, v{X+1}, v{X+2}, s[62:63]")
E(f"v_cndmask_b32 v61, v{X}, v{X+1}, s[62:63]")
E("v_cvt_pk_bf16_f32 v53, v60, v60"); E("v_cvt_pk_bf16_f32 v54, v60, v61")
E(f"v_cvt_pk_bf16_f32 v57, v{X+3}, v{X+3}"); E(f"v_cvt_pk_bf16_f32 v58, v{X+3}, v{X+2}")
E("s_waitcnt lgkmcnt(1)")
for ks in range(8): mfmaH(2, ks)
E("ds_write_b32 v45, v55")
E("s_mov_b64 exec, s[58:59]"); E("s_mov_b32 exec_hi, -1")
E("ds_write_b32 v45, v59 offset:64")
E("s_mov_b64 exec, s[56:57]")
nop(6)
for i in range(4): E(f"v_cvt_pk_bf16_f32 v{62+i}, v{DT+8+i}, v{DT+8+i}")
for i in range(4): E(f"ds_write_b32 v47, v{62+i} offset:{512+64*i}")
E("s_waitcnt lgkmcnt(0)")
E("ds_read_b32 v52, v45 offset:4"); E("ds_read_b32 v56, v45 offset:68")
E("ds_read2_b32 v[66:67], v48 offset0:128 offset1:129"); E("ds_read2_b32 v[74:75], v48 offset0:192 offset1:193")
E("v_and_b32 v60, 1, v0"); E("v_cmp_eq_u32 vcc, 1, v60"); E("v_mov_b32 v61, 0x07060100"); E("v_mov_b32 v60, 0x03020100")
E("v_cndmask_b32 v60, v61, v60, vcc")
E("v_mov_b32 v61, 0x03020100"); E("v_mov_b32 v62, 0x07060100"); E("v_cndmask_b32 v61, v61, v62, s[62:63]")
E("s_waitcnt lgkmcnt(2)")
E("v_perm_b32 v52, v57, v52, v61")
E("ds_write_b128 v46, v[52:55]")
E("s_mov_b64 exec, s[58:59]"); E("s_mov_b32 exec_hi, -1")
E("v_subrev_u32 v46, 256, v46")
E("ds_write_b128 v46, v[56:59]")
E("s_mov_b64 exec, s[56:57]")
E("s_waitcnt lgkmcnt(2)")
for (b, o) in ((64, 1024), (72, 0)):
    E(f"v_mov_b32 v{b}, v{b+3}"); E(f"v_perm_b32 v{b+1}, v{b+2}, v{b+3}, v60"); E(f"v_mov_b32 v{b+3}, v{b+2}")
    E(f"ds_write_b128 v49, {v(b,4)} offset:{o}")
E("v_lshlrev_b32 v5, 5, v32"); E("v_lshl_add_u32 v5, v33, 3, v5"); E(f"s_mul_i32 s61, s3, {YCB}"); E(f"s_add_u32 s61, s61, {Y0}"); E("v_add_u32 v5, s61, v5")
E("v_lshlrev_b32 v10, 2, v0")
E("s_lshl_b32 s61, s3, 10"); E("v_lshlrev_b32 v11, 4, v0"); E("v_add_u32 v11, s61, v11"); E(f"v_add_u32 v12, {G0}, v11")
stamp(2)
ACC = 32; POOL = 64; NSLOT = int(OPT.get('nslot', 28)); MAXFL = int(OPT.get('maxfl', 10))
E("s_waitcnt lgkmcnt(0)")
class Conv:
    def __init__(s):
        s.q = []
        s.slot = {}
        s.free = list(range(NSLOT))
    def ds(s, txt, id=None): E(txt); s.q.append(id)
    def need(s, f):
        if f in s.q:
            n = len(s.q) - 1 - s.q.index(f)
            assert n <= 15
            E(f"s_waitcnt lgkmcnt({n})"); s.q = s.q[len(s.q) - n:]
    def load(s, f):
        sl = s.free.pop(0); s.slot[f] = sl
        if f[0] == 'A': s.ds(f"ds_read_b128 {v(POOL+4*sl,4)}, v{VUA} offset:{512*f[1]+64*f[2]}", f)
        else: s.ds(f"ds_read_b128 {v(POOL+4*sl,4)}, v{VKB} offset:{512*(7-f[1])+64*f[2]}", f)
cv = Conv()
started = set()
plan = []
for ph, al in enumerate(PHASES):
    ms = []
    for c in range(8):
        prs = [(a, P) for a in al for P in range(a, 8)]
        prs.sort(key=lambda x: (x[1] - x[0], x[0]))
        if c == 7: prs.sort(key=lambda x: (0 if x[1] in al else 1, x[1] - x[0], x[0]))
        for (a, P) in prs: ms.append((('A', a, c, ph), ('B', P - a, c, ph), P))
    plan.append(ms)
def loadorder(ms):
    o = []
    for m in ms:
        for f in m[:2]:
            if f not in o: o.append(f)
    return o
pre = set()
for ph, ms in enumerate(plan):
    lo = [f for f in loadorder(ms) if f not in pre]
    last = {}
    for i, m in enumerate(ms):
        last[m[0]] = i; last[m[1]] = i
    E("s_barrier")
    stamp(3 + ph)
    if ph == 0: E("buffer_load_dword v13, v10, s[16:19], 0 offen sc1")
    while lo and cv.free and len(cv.q) < MAXFL: cv.load(lo.pop(0))
    for i, m in enumerate(ms):
        while m[0] not in cv.slot or m[1] not in cv.slot: cv.load(lo.pop(0))
        cv.need(m[0]); cv.need(m[1])
        P = m[2]; c = v(ACC + 4*P, 4) if P in started else "0"; started.add(P)
        E(f"v_mfma_f32_16x16x32_bf16 {v(ACC+4*P,4)}, {v(POOL+4*cv.slot[m[0]],4)}, {v(POOL+4*cv.slot[m[1]],4)}, {c}")
        for f in m[:2]:
            if last[f] == i: cv.free.append(cv.slot.pop(f))
        k = 0
        while lo and cv.free and len(cv.q) < MAXFL and k < 2: cv.load(lo.pop(0)); k += 1
        if ph == 0 and i == (len(ms) * 5) // 8:
            E("s_mov_b32 s64, 0"); E("s_mov_b32 s65, 0x01010101")
            Lb("L_poll")
            E("s_waitcnt vmcnt(0)"); E("v_cmp_ne_u32 vcc, s65, v13"); E("s_cbranch_vccz L_pollok")
            E("s_add_u32 s64, s64, 1"); E("s_cmp_gt_u32 s64, 200000"); E("s_cbranch_scc1 L_pollok")
            E("s_sleep 2"); E("buffer_load_dword v13, v10, s[16:19], 0 offen sc1"); E("s_branch L_poll")
            Lb("L_pollok")
            E("buffer_load_dwordx4 v[16:19], v11, s[12:15], 0 offen sc1")
    if ph + 1 < NPH:
        for f in loadorder(plan[ph + 1]):
            if f[0] == 'B' and f[2] == 0 and cv.free and len(cv.q) < 8: cv.load(f); pre.add(f)
    lastw = max(i for i, m in enumerate(ms) if m[2] in PHASES[ph])
    d = len(ms) - 1 - lastw
    nop(max(0, 8 - d))
    for j, P in enumerate(PHASES[ph]):
        t = 20 + 2 * (j % 4)
        E(f"v_cvt_pk_bf16_f32 v{t}, v{ACC+4*P}, v{ACC+4*P+1}"); E(f"v_cvt_pk_bf16_f32 v{t+1}, v{ACC+4*P+2}, v{ACC+4*P+3}")
        cv.ds(f"ds_write_b64 v{VYW}, {v(t,2)} offset:{(ph&1)*YBUF + 512*j}")
    if ph == 0:
        E("s_waitcnt vmcnt(0)"); cv.ds("ds_write_b128 v12, v[16:19]")
    E("s_waitcnt lgkmcnt(0)"); cv.q = []
E("s_barrier")
stamp(3 + NPH, 14)
E("s_endpgm")

Lb("L_helper")
E("s_sub_u32 s23, s3, 4")
E("s_load_dwordx2 s[28:29], s[0:1], 48"); E("s_load_dwordx2 s[30:31], s[0:1], 120")
E("s_lshl_b32 s24, s21, 6"); E("s_lshl_b32 s25, s23, 4"); E("s_add_u32 s24, s24, s25")
E("v_and_b32 v1, 15, v0"); E("v_add_u32 v1, s24, v1"); E("v_lshlrev_b32 v1, 10, v1"); E("v_add_u32 v1, s22, v1")
RPH = [256 * len(al) for al in PHASES]
R0 = [256 * al[0] for al in PHASES]
E("v_lshlrev_b32 v2, 11, v0"); E("v_add_u32 v2, s22, v2")
E("v_and_b32 v3, 7, v0"); E("v_lshlrev_b32 v3, 10, v3"); E("v_add_u32 v3, s22, v3"); E("v_subrev_u32 v3, 0x2000, v3")
E("s_waitcnt lgkmcnt(0)")
stamp(0, 15)
E("s_load_dword s32, s[28:29], s22"); E("s_load_dword s33, s[30:31], s22")
vmq = []
E("buffer_load_dword v1, v1, s[4:7], 0 offen"); vmq.append('pf')
UR = 16
E("s_lshl_b32 s34, s23, 17")
NU = 4
for k in range(NU):
    E(f"s_add_u32 s{36+k}, s34, {k * 512 * 1024}")
for k in range(NU):
    E(f"v_add_u32 v4, s{36+k}, v3")
    E(f"buffer_load_dword v{UR+3*k}, v4, s[4:7], 0 offen"); vmq.append(('u', k))
    E(f"buffer_load_dword v{UR+3*k+1}, v2, s[4:7], s{36+k} offen"); vmq.append(('u', k))
    E(f"buffer_load_dword v{UR+3*k+2}, v2, s[4:7], s{36+k} offen offset:1024"); vmq.append(('u', k))
def vmwait(tag):
    idx = max(i for i, t in enumerate(vmq) if t == tag)
    n = len(vmq) - 1 - idx
    E(f"s_waitcnt vmcnt({n})"); del vmq[:idx + 1]
for i in range(4): E(f"v_mov_b32 v{40+i}, 0")
E("v_and_b32 v5, 7, v0"); E("v_lshlrev_b32 v6, 2, v5"); E(f"s_mov_b32 s47, {offc}"); E("v_lshrrev_b32 v6, v6, s47"); E("v_and_b32 v6, 15, v6")
E("v_lshlrev_b32 v6, 4, v6"); E(f"v_mul_u32_u24 v5, {CS}, v5"); E("v_add_u32 v5, v5, v6")
E("v_bfe_u32 v6, v0, 3, 1"); E(f"v_mul_u32_u24 v6, {UCH}, v6"); E("v_add_u32 v5, v5, v6")
E("ds_write_b128 v5, v[40:43]")
E("s_waitcnt lgkmcnt(0)"); E("s_barrier")
RAW = U0 + 16 * (OFF[0] + 2)
E("s_lshl_b32 s35, s23, 8")
E("v_lshlrev_b32 v5, 2, v0"); E("v_add_u32 v5, s35, v5"); E(f"v_add_u32 v5, {RAW}, v5")
E("v_and_b32 v6, 7, v0"); E("v_lshlrev_b32 v6, 1, v6"); E("v_add_u32 v6, s35, v6"); E(f"v_add_u32 v6, {RAW-16}, v6")
E("v_and_b32 v7, 15, v0"); E("v_lshlrev_b32 v7, 4, v7"); E("v_add_u32 v7, s35, v7")
E("v_lshrrev_b32 v8, 5, v0"); E(f"v_mul_u32_u24 v8, {UCH}, v8"); E("v_add_u32 v7, v7, v8")
E("v_bfe_u32 v8, v0, 4, 1")
E("v_lshl_add_u32 v9, v8, 3, v7"); E(f"v_add_u32 v9, {RAW-16}, v9")
E("v_cmp_eq_u32 vcc, 1, v8")
for j in range(4):
    E(f"v_mov_b32 v{10+j}, {U0 + j*CS + 16*(OFF[j]+1)}"); E(f"v_mov_b32 v14, {U0 + (4+j)*CS + 16*(OFF[4+j]+1)}")
    E(f"v_cndmask_b32 v{10+j}, v{10+j}, v14, vcc"); E(f"v_add_u32 v{10+j}, v{10+j}, v7")
E("s_mov_b32 s40, 0x05040100"); E("s_mov_b32 s41, 0x07060302")
E("s_lshl_b32 s42, s23, 8"); E("v_lshlrev_b32 v14, 2, v0"); E("v_add_u32 v14, s42, v14"); E(f"v_add_u32 v15, {G0}, v14"); E(f"v_add_u32 v14, {Y0}, v14")
E("s_lshl_b32 s44, s32, 16"); E("s_and_b32 s45, s32, 0xffff0000"); E("s_lshl_b32 s46, s33, 16"); E("s_and_b32 s47, s33, 0xffff0000")
def copies(k):
    vmwait(('u', k))
    x, r0, r1 = UR + 3*k, UR + 3*k + 1, UR + 3*k + 2
    E(f"v_perm_b32 v40, v{r1}, v{r0}, s40"); E(f"v_perm_b32 v41, v{r1}, v{r0}, s41")
    E(f"ds_write_b32 v5, v40 offset:{1024*k}"); E(f"ds_write_b32 v5, v41 offset:{1024*k+UCH}")
    E(f"ds_write_b16 v6, v{x} offset:{1024*k}"); E(f"ds_write_b16_d16_hi v6, v{x} offset:{1024*k+UCH}")
    for j in range(3): E(f"ds_read_b64 {v(44+2*j,2)}, v9 offset:{1024*k+8*j}")
    E("s_waitcnt lgkmcnt(0)")
    E(f"ds_write_b128 v10, v[44:47] offset:{1024*k}")
    for i in range(4): E(f"v_alignbit_b32 v{52+i}, v{45+i}, v{44+i}, 16")
    E(f"ds_write_b128 v11, v[52:55] offset:{1024*k}")
    for i in range(4): E(f"v_mov_b32 v{56+i}, v{45+i}")
    E(f"ds_write_b128 v12, v[56:59] offset:{1024*k}")
    for i in range(4): E(f"v_alignbit_b32 v{60+i}, v{46+i}, v{45+i}, 16")
    E(f"ds_write_b128 v13, v[60:63] offset:{1024*k}")
def rnd(a, t):
    E(f"v_cvt_pk_bf16_f32 v{t}, v{a}, v{a+1}"); E(f"v_cvt_pk_bf16_f32 v{t+1}, v{a+2}, v{a+3}")
    unpack(t, a, a+1); unpack(t+1, a+2, a+3)
def epilogue(k, ph, j):
    yb = (ph & 1) * YBUF + 1024 * j
    for cb in range(4): E(f"ds_read_b32 v{44+cb}, v14 offset:{yb + cb*YCB}")
    E(f"ds_read_b32 v48, v15 offset:{1024*k}")
    r0, r1 = UR + 3*k + 1, UR + 3*k + 2
    unpack(r0, 64, 65); unpack(r1, 66, 67)
    E("v_pk_mul_f32 v[68:69], v[64:65], s[44:45]"); E("v_pk_mul_f32 v[70:71], v[66:67], s[44:45]")
    E("v_pk_mul_f32 v[72:73], v[64:65], s[46:47]"); E("v_pk_mul_f32 v[74:75], v[66:67], s[46:47]")
    rnd(68, 50); rnd(72, 50)
    E("s_waitcnt lgkmcnt(0)")
    unpack(44, 76, 78); unpack(45, 77, 79); unpack(46, 80, 82); unpack(47, 81, 83)
    unpack(48, 84, 86)
    E("v_sub_f32 v88, 1.0, v84"); E("v_sub_f32 v90, 1.0, v86"); E("v_cvt_pk_bf16_f32 v50, v88, v90"); unpack(50, 88, 90)
    E("v_pk_add_f32 v[68:69], v[68:69], v[76:77]"); E("v_pk_add_f32 v[70:71], v[70:71], v[78:79]")
    E("v_pk_add_f32 v[72:73], v[72:73], v[80:81]"); E("v_pk_add_f32 v[74:75], v[74:75], v[82:83]")
    rnd(68, 50); rnd(72, 50)
    E("v_pk_mul_f32 v[68:69], v[68:69], v[84:85] op_sel_hi:[1,0]"); E("v_pk_mul_f32 v[70:71], v[70:71], v[86:87] op_sel_hi:[1,0]")
    E("v_pk_mul_f32 v[72:73], v[72:73], v[88:89] op_sel_hi:[1,0]"); E("v_pk_mul_f32 v[74:75], v[74:75], v[90:91] op_sel_hi:[1,0]")
    rnd(68, 50); rnd(72, 50)
    E("v_pk_add_f32 v[68:69], v[68:69], v[72:73]"); E("v_pk_add_f32 v[70:71], v[70:71], v[74:75]")
    o = 92 + 2 * k
    E(f"v_cvt_pk_bf16_f32 v{o}, v68, v69"); E(f"v_cvt_pk_bf16_f32 v{o+1}, v70, v71")
    E(f"buffer_store_dword v{o}, v2, s[8:11], s{36+k} offen"); E(f"buffer_store_dword v{o+1}, v2, s[8:11], s{36+k} offen offset:1024")
    vmq.extend(['st', 'st'])
units = [[a // 2 for a in al[::2]] for al in PHASES]
for ph in range(NPH + 1):
    if ph >= 2:
        for j, k in enumerate(units[ph - 2]): epilogue(k, ph - 2, j)
    if ph < NPH:
        for k in units[ph]: copies(k)
    E("s_waitcnt lgkmcnt(0)")
    stamp(1 + ph)
    E("s_barrier")
for j, k in enumerate(units[NPH - 1]): epilogue(k, NPH - 1, j)
stamp(2 + NPH)
if STAMP:
    E("s_waitcnt vmcnt(0)"); stamp(3 + NPH, 14)
Lb("L_end")
E("s_endpgm")

import os; sys.path.insert(0, os.path.dirname(__file__)); import hz
out, ncnt = hz.fix(out, int(OPT.get('hzv', 0))); print('hazard nops', ncnt)
hdr = open('cdna_kernels/%s.s.ref' % NAME).read().split('\n')
hdr = [l for l in hdr if l.startswith(';') and '@launch' not in l and l.startswith('; ') ]
txt = '\n'.join(hdr[:22]) + f"\n; @launch grid=(256,1,1) block=(512,1,1) lds={LDS}\n"
txt += f""".amdgcn_target "amdgcn-amd-amdhsa--gfx950"
.text
.globl {NAME}_kernel
.p2align 8
.type {NAME}_kernel,@function
{NAME}_kernel:
""" + '\n'.join(out) + f"""
.section .rodata,"a"
.p2align 6
.amdhsa_kernel {NAME}_kernel
  .amdhsa_next_free_vgpr 256
  .amdhsa_next_free_sgpr 102
  .amdhsa_accum_offset 256
  .amdhsa_group_segment_fixed_size 0
  .amdhsa_kernarg_size 160
  .amdhsa_user_sgpr_count 2
  .amdhsa_user_sgpr_kernarg_segment_ptr 1
  .amdhsa_system_sgpr_workgroup_id_x 1
.end_amdhsa_kernel
"""
open(sys.argv[1], 'w').write(txt)
print("LDS", LDS, "lines", len(out))
```

```python
import sys, math, struct
NAME = "gated_mix__ssm_conv_s4d__ssm_conv_s4__prompt"
OPT = dict(a.split('=') for a in sys.argv[2:] if '=' in a)
STAMP = int(OPT.get('stamp', 0))
PHASES = eval(OPT.get('phases', '[[0,1],[2,3],[4,5],[6],[7]]'))
NPH = len(PHASES)
out = []
def E(s): out.append("    " + s)
def Lb(s): out.append(s + ":")
def f2u(x): return struct.unpack('<I', struct.pack('<f', x))[0]
def v(i, n=1): return f"v{i}" if n == 1 else f"v[{i}:{i+n-1}]"
def s(i, n=1): return f"s{i}" if n == 1 else f"s[{i}:{i+n-1}]"
def nop(n):
    if n > 0: E(f"s_nop {n-1}")

LATE = eval(OPT.get('late', '[2,3]'))
GPOS = eval(OPT.get('gpos', '[0,2,9,14,99,101,102,103]'))
GF = eval(OPT.get('gf', '[6,8]'))
PRIO = int(OPT.get('prio', 3))
OFF = [12, 3, 7, 6, 10, 12, 1, 0]
CS = 272 * 16
UCH = 8 * CS
U0 = 0
KR0 = 2 * UCH; KRS = 288 * 16
E0 = KR0 + 4 * KRS; ES = 288; EW = 16 * ES
Y0 = E0; YCB = 2048; YBUF = 4 * YCB
G0 = E0 + 2 * YBUF
PX0 = E0 + 8 * EW
CNT = PX0 + 4 * 3072
LDS = CNT + 16
offc = 0
for i, o in enumerate(OFF): offc |= o << (4 * i)
SREG = {**{k: 80 + 2 * k for k in range(9)}, 15: 98, 14: 100, 9: 28, 10: 30, 11: 32, 12: 36, 13: 38}
used = set()
def stamp(k, real=None):
    if not STAMP: return
    E(f"s_memtime s[{SREG[k]}:{SREG[k]+1}]"); used.add(k)
    if real is not None: E(f"s_memrealtime s[{SREG[real]}:{SREG[real]+1}]"); used.add(real)
    if real == 14:
        E("s_waitcnt lgkmcnt(0)")
        E("s_lshl_b32 s20, s2, 3"); E("s_add_u32 s20, s20, s3"); E("s_lshl_b32 s20, s20, 6"); E("s_add_u32 s20, s20, 0x100000"); E("v_mov_b32 v251, s20")
        for j in sorted(used):
            E(f"v_mov_b32 v250, s{SREG[j]}"); E(f"buffer_store_dword v250, v251, s[12:15], 0 offen offset:{4*j}")
vmq = None
lab = [0]
def role(helper):
    lab[0] += 1; l = f"L_r{lab[0]}"
    E("s_cmp_lt_u32 s3, 4"); E(f"s_cbranch_scc{1 if helper else 0} {l}")
    return l
def unpack(src, lo, hi):
    E(f"v_lshlrev_b32 v{lo}, 16, v{src}"); E(f"v_and_b32 v{hi}, 0xffff0000, v{src}")
E("s_cmp_ge_u32 s2, 256"); E("s_cbranch_scc1 L_end")
E("s_load_dwordx2 s[4:5], s[0:1], 0")
E("s_load_dwordx4 s[8:11], s[0:1], 136")
E("s_load_dwordx2 s[12:13], s[0:1], 152")
E("v_lshrrev_b32 v1, 6, v0"); E("v_and_b32 v0, 63, v0")
E("v_readfirstlane_b32 s3, v1")
E("s_load_dwordx2 s[42:43], s[0:1], 128")
E("s_load_dwordx2 s[68:69], s[0:1], 48"); E("s_load_dwordx2 s[70:71], s[0:1], 120")
E("s_bfe_u32 s24, s3, 0x10001"); E("s_cmp_eq_u32 s24, 0"); E("s_cbranch_scc0 L_ptrB")
E("s_load_dwordx4 s[28:31], s[0:1], 8"); E("s_load_dwordx4 s[36:39], s[0:1], 24")
E("s_load_dwordx2 s[40:41], s[0:1], 40"); E("s_load_dwordx4 s[32:35], s[0:1], 8")
E("s_branch L_ptrdone")
Lb("L_ptrB")
E("s_load_dwordx4 s[28:31], s[0:1], 64"); E("s_load_dwordx4 s[32:35], s[0:1], 80")
E("s_load_dwordx4 s[36:39], s[0:1], 96"); E("s_load_dwordx2 s[40:41], s[0:1], 112")
Lb("L_ptrdone")
E("s_and_b32 s20, s2, 7"); E("s_lshr_b32 s21, s2, 3")
E("s_lshl_b32 s20, s20, 5"); E("s_add_u32 s20, s20, s21"); E("s_lshl_b32 s22, s20, 2")
E("s_and_b32 s23, s3, 1"); E("s_lshr_b32 s66, s3, 2"); E("s_and_b32 s67, s3, 3")
E("s_lshl_b32 s25, s20, 1"); E("s_add_u32 s25, s25, s23"); E("s_lshl_b32 s25, s25, 8"); E("s_lshl_b32 s26, s66, 7"); E("s_add_u32 s25, s25, s26")
E("v_lshlrev_b32 v2, 1, v0"); E("v_add_u32 v2, s25, v2")
for i in range(10, 16): E(f"v_mov_b32 v{i}, 0")
E("s_lshl_b32 s26, s2, 3"); E("s_lshl_b32 s27, s3, 1"); E("s_add_u32 s26, s26, s27"); E("s_lshl_b32 s26, s26, 10")
E("v_lshlrev_b32 v3, 4, v0"); E("v_add_u32 v4, s26, v3")
E("s_lshl_b32 s26, s21, 6"); E("s_lshl_b32 s27, s67, 4"); E("s_add_u32 s26, s26, s27")
E("v_and_b32 v1, 15, v0"); E("v_add_u32 v1, s26, v1"); E("v_lshlrev_b32 v1, 10, v1"); E("v_add_u32 v1, s22, v1")
E("s_waitcnt lgkmcnt(0)")
E("s_mov_b32 s16, s10"); E("s_mov_b32 s17, s11")
E("s_mov_b32 s6, 0x200000"); E("s_mov_b32 s7, 0x20000"); E("s_mov_b32 s10, 0x200000"); E("s_mov_b32 s11, 0x20000")
E("s_mov_b32 s14, 0x200000"); E("s_mov_b32 s15, 0x20000"); E("s_mov_b32 s18, 256"); E("s_mov_b32 s19, 0x20000")
E("s_load_dword s44, s[40:41], s22"); E("s_load_dword s72, s[68:69], s22"); E("s_load_dword s73, s[70:71], s22")
for r, p in ((10, 28), (11, 30), (12, 36), (13, 38), (14, 32), (15, 34)):
    E(f"global_load_short_d16_hi v{r}, v2, s[{p}:{p+1}]")
l = role(False)
E("buffer_load_dwordx4 v[16:19], v4, s[4:7], 0 offen"); E("buffer_load_dwordx4 v[20:23], v4, s[4:7], 0 offen offset:1024")
E("global_load_dwordx4 v[24:27], v3, s[42:43]")
Lb(l)
l = role(True)
E("buffer_load_dword v1, v1, s[4:7], 0 offen")
Lb(l)
stamp(0, 15)
E(f"s_mul_i32 s45, s67, {KRS}"); E(f"s_add_u32 s45, s45, {KR0}")
E(f"s_mul_i32 s46, s3, {EW}"); E(f"s_add_u32 s46, s46, {E0}")
E(f"s_mov_b32 s47, {offc}")
for i in range(4): E(f"v_mov_b32 v{28+i}, 0")
E("v_and_b32 v5, 31, v0"); E("v_lshlrev_b32 v5, 4, v5"); E("v_add_u32 v5, s45, v5"); E("ds_write_b128 v5, v[28:31] offset:4096")
E("v_and_b32 v5, 7, v0"); E("v_lshlrev_b32 v6, 2, v5"); E("v_lshrrev_b32 v6, v6, s47"); E("v_and_b32 v6, 15, v6")
E("v_lshlrev_b32 v6, 4, v6"); E(f"v_mul_u32_u24 v5, {CS}, v5"); E("v_add_u32 v5, v5, v6")
E("v_bfe_u32 v6, v0, 3, 1"); E(f"v_mul_u32_u24 v6, {UCH}, v6"); E("v_add_u32 v5, v5, v6")
E("ds_write_b128 v5, v[28:31]")
E(f"v_mov_b32 v5, {CNT}"); E("ds_write_b32 v5, v28")
VEW, VER = 6, 7
E("v_lshlrev_b32 v6, 2, v0"); E("v_add_u32 v6, s46, v6")
E("v_and_b32 v32, 15, v0"); E("v_lshrrev_b32 v33, 4, v0")
E(f"v_mul_u32_u24 v7, {ES}, v32"); E("v_lshl_add_u32 v7, v33, 4, v7"); E("v_add_u32 v7, s46, v7")
E("v_lshlrev_b32 v8, 11, v0"); E("v_add_u32 v8, s22, v8")
E("v_and_b32 v9, 7, v0"); E("v_lshlrev_b32 v9, 10, v9"); E("v_add_u32 v9, s22, v9"); E("v_subrev_u32 v9, 0x2000, v9")
E("s_lshl_b32 s74, s67, 17")
for k in range(4): E(f"s_add_u32 s{76+k}, s74, {k * 512 * 1024}")
E("s_mov_b64 s[56:57], exec"); E("s_mov_b32 s58, 0"); E("s_mov_b32 s59, 0x80000000"); E("s_mov_b32 s62, -1"); E("s_mov_b32 s63, 0")
E("s_waitcnt lgkmcnt(0)"); E("s_barrier")
E("s_lshl_b32 s49, s44, 16"); E("s_and_b32 s50, s44, 0xffff0000"); E("s_cmp_eq_u32 s23, 0"); E("s_cselect_b32 s49, s49, s50")
E(f"s_mov_b32 s51, {f2u(1.4426950408889634)}"); E("v_mov_b32 v37, s49"); E("v_mul_f32 v37, s51, v37"); E("v_exp_f32 v37, v37")
E("v_cvt_pk_bf16_f32 v37, v37, v37"); E("v_and_b32 v37, 0xffff0000, v37")
E("s_waitcnt vmcnt(0)")
stamp(1)
UR = 16
vmq_h = []
def gather_h(r):
    k, j = r // 2, r & 1
    if j == 0:
        E(f"buffer_load_dword v{UR+3*k+1}, v8, s[4:7], s{76+k} offen"); vmq_h.append(('u', k))
    else:
        E(f"v_add_u32 v4, s{76+k}, v9")
        E(f"buffer_load_dword v{UR+3*k+2}, v8, s[4:7], s{76+k} offen offset:1024")
        E("s_mov_b64 exec, 0xff"); E(f"buffer_load_dword v{UR+3*k}, v4, s[4:7], 0 offen"); E("s_mov_b64 exec, s[56:57]")
        vmq_h.extend([('u', k)] * 2)
def gathers(pos):
    rs = [r for r in range(8) if GPOS[r] == pos]
    if rs and pos < 99: l = role(True)
    for r in rs: gather_h(r)
    if rs and pos < 99: Lb(l)
vmq = vmq_h
gathers(0)
l = role(False)
for rr in range(2): E(f"v_mov_b32 v{28+rr}, 0")
for j in range(4):
    for rr in range(2): E(f"v_dot2_f32_bf16 v{28+rr}, v{16+4*rr+j}, v{24+j}, v{28+rr}")
for dpp in ("row_shr:1 row_mask:0xf", "row_shr:2 row_mask:0xf", "row_shr:4 row_mask:0xf", "row_shr:8 row_mask:0xf", "row_bcast:15 row_mask:0xa", "row_bcast:31 row_mask:0xc"):
    for rr in range(2): E(f"v_add_f32_dpp v{28+rr}, v{28+rr}, v{28+rr} {dpp} bank_mask:0xf")
E("v_cvt_pk_bf16_f32 v30, v28, v29"); unpack(30, 28, 29)
for rr in range(2): E(f"v_mul_f32 v{28+rr}, s51, v{28+rr}")
for rr in range(2): E(f"v_exp_f32 v{28+rr}, -v{28+rr}")
for rr in range(2): E(f"v_add_f32 v{28+rr}, 1.0, v{28+rr}")
for rr in range(2): E(f"v_rcp_f32 v{28+rr}, v{28+rr}")
E("s_lshl_b32 s54, s2, 5"); E("s_lshl_b32 s55, s3, 3"); E("s_add_u32 s54, s54, s55"); E("v_mov_b32 v31, s54")
E("v_cvt_pk_bf16_f32 v30, v28, v29"); unpack(30, 28, 29)
E("s_mov_b64 exec, s[58:59]")
E("buffer_store_dwordx2 v[28:29], v31, s[12:15], 0 offen sc1")
E("s_mov_b64 exec, s[56:57]")
Lb(l)
E("s_cmp_eq_u32 s24, 0"); E("s_cbranch_scc0 L_parB")
E("v_mul_f32 v10, s51, v10"); E("v_exp_f32 v10, v10"); E("v_add_f32 v14, v37, v37"); E("v_mov_b32 v15, 0")
E("v_cvt_pk_bf16_f32 v10, v10, v10"); E("v_and_b32 v10, 0xffff0000, v10"); E("v_xor_b32 v10, 0x80000000, v10")
E("s_branch L_pardone")
Lb("L_parB")
E("v_mul_f32 v14, v37, v14"); E("v_mul_f32 v15, v37, v15")
Lb("L_pardone")
W1, W2, W4, W8, W16, W24, W32, W128, W256, W512 = [40 + 2 * i for i in range(10)]
Q = [60 + 2 * i for i in range(8)]; R = [76 + 2 * i for i in range(4)]; T = [84 + 2 * i for i in range(4)]
LF, HA, DT, HB = 96, 112, 128, 140
E("v_mul_f32 v10, v37, v10"); E("v_mul_f32 v11, v37, v11")
E("v_mul_f32 v10, s51, v10"); E("v_mul_f32 v11, 0.15915494, v11")
E("v_mul_f32 v34, 0x43000000, v10"); E("v_mul_f32 v35, 0x43000000, v11")
E("v_fract_f32 v11, v11"); E("v_fract_f32 v35, v35")
E("v_exp_f32 v10, v10"); E("v_exp_f32 v34, v34")
E(f"v_cos_f32 v{W1}, v11"); E(f"v_sin_f32 v{W1+1}, v11"); E(f"v_cos_f32 v{W128}, v35"); E(f"v_sin_f32 v{W128+1}, v35")
ct = [0]
def put(src, row, conj=False):
    t = 92 + ct[0]; ct[0] = (ct[0] + 1) % 4
    E(f"v_cvt_pk_bf16_f32 v{t}, v{src}, {'-' if conj else ''}v{src+1}")
    E(f"ds_write_b32 v{VEW}, v{t} offset:{row*ES}"); dsn[0] += 1
dsn = [0]
bi = [0]; gfc = [0]
def batch(items, pre=(), conj=False, mf=None):
    bi[0] += 1
    gathers(bi[0])
    for k, it in enumerate(items): E(f"v_pk_mul_f32 {v(T[k],2)}, {v(it[1],2)}, {v(it[2],2)} op_sel:[0,0] op_sel_hi:[0,1]")
    for (sr, row) in pre[:len(pre)//2]: put(sr, row, conj)
    if mf: mf(0)
    for k, it in enumerate(items): E(f"v_pk_fma_f32 {v(it[0],2)}, {v(it[1],2)}, {v(it[2],2)}, {v(T[k],2)} op_sel:[1,1,0] op_sel_hi:[1,0,1] neg_lo:[0,1,0]")
    for (sr, row) in pre[len(pre)//2:]: put(sr, row, conj)
    if mf: mf(1)
    for it in items:
        if len(it) > 3: put(it[0], it[3], conj)
    if bi[0] == GF[0]:
        l = role(False)
        E("s_waitcnt vmcnt(0)")
        E(f"v_mov_b32 v30, {CNT}"); E("v_mov_b32 v31, 1")
        E("s_mov_b64 exec, 1"); E("ds_add_rtn_u32 v29, v30, v31"); E("s_mov_b64 exec, s[56:57]")
        sv = vmq_h[:]; stamp(12); vmq_h[:] = sv
        Lb(l); gfc[0] = len(out)
    if bi[0] == GF[1]:
        n = sum(1 for x in out[gfc[0]:] if x.strip().startswith('ds_'))
        l = role(False)
        E(f"s_waitcnt lgkmcnt({min(n, 15)})")
        E("v_readfirstlane_b32 s60, v29")
        E("s_cmp_eq_u32 s60, 3"); E(f"s_cbranch_scc0 {l}")
        E("v_mov_b32 v30, s2"); E("s_mov_b64 exec, 1")
        E("buffer_store_byte v31, v30, s[16:19], 0 offen sc1")
        E("s_mov_b64 exec, s[56:57]")
        Lb(l)
def readF(base):
    for ks in range(4): E(f"ds_read_b128 {v(base+4*ks,4)}, v{VER} offset:{64*ks}")
    dsn[0] = 0
def mfm(tile, hf, k0):
    def f(j):
        ks = k0 + j
        if ks == 0: E(f"s_waitcnt lgkmcnt({dsn[0]})")
        c = "0" if ks == 0 else v(DT+4*tile, 4)
        E(f"v_mfma_f32_16x16x32_bf16 {v(DT+4*tile,4)}, {v(hf+4*ks,4)}, {v(LF+4*ks,4)}, {c}")
    return f
E(f"v_pk_mul_f32 {v(T[0],2)}, v[12:13], v[14:15] op_sel:[0,0] op_sel_hi:[0,1]")
E(f"v_pk_mul_f32 {v(W1,2)}, {v(W1,2)}, v[10:11] op_sel_hi:[1,0]"); E(f"v_pk_mul_f32 {v(W128,2)}, {v(W128,2)}, v[34:35] op_sel_hi:[1,0]")
E(f"v_pk_fma_f32 {v(Q[0],2)}, v[12:13], v[14:15], {v(T[0],2)} op_sel:[1,1,0] op_sel_hi:[1,0,1] neg_lo:[0,1,0]")
batch([(W2, W1, W1), (W256, W128, W128), (Q[1], Q[0], W128, 8), (R[0], Q[0], W1, 1)], pre=[(Q[0], 0)])
batch([(W4, W2, W2), (W512, W256, W256), (R[1], Q[1], W1, 9), (Q[2], Q[0], W256)])
batch([(R[2], Q[0], W2, 2), (R[0], R[0], W2, 3), (R[3], Q[1], W2, 10), (R[1], R[1], W2, 11)])
batch([(W8, W4, W4), (Q[3], Q[1], W256), (Q[4], Q[0], W512), (Q[5], Q[1], W512)])
batch([(R[2], R[2], W2, 4), (R[0], R[0], W2, 5), (R[3], R[3], W2, 12), (R[1], R[1], W2, 13)])
batch([(W16, W8, W8), (Q[6], Q[2], W512), (Q[7], Q[3], W512)])
batch([(R[2], R[2], W2, 6), (R[0], R[0], W2, 7), (R[3], R[3], W2, 14), (R[1], R[1], W2, 15)])
readF(HA)
E("v_mov_b32 v36, 0x3f80"); E(f"ds_write_b32 v{VEW}, v36")
batch([(W24, W16, W8, 3), (W32, W16, W16, 4)], pre=[(W8, 1), (W16, 2)], conj=True)
batch([(R[1], W8, W32, 5), (R[2], W16, W32, 6), (R[3], W24, W32, 7), (R[0], W32, W32, 8)], conj=True)
batch([(R[1], R[1], W32, 9), (R[2], R[2], W32, 10), (R[3], R[3], W32, 11), (R[0], R[0], W32, 12)], conj=True)
batch([(R[1], R[1], W32, 13), (R[2], R[2], W32, 14), (R[3], R[3], W32, 15)], conj=True)
readF(LF)
batch([(R[0], Q[2], W2, 1), (R[1], Q[3], W2, 5), (R[2], Q[2], W4, 2), (R[3], Q[3], W4, 6)], pre=[(Q[2], 0), (Q[3], 4)])
batch([(R[2], R[2], W2, 3), (R[3], R[3], W2, 7), (R[0], Q[4], W4, 9), (R[1], Q[5], W4, 11)], pre=[(Q[4], 8), (Q[5], 10)], mf=mfm(0, HA, 0))
batch([(R[0], Q[6], W4, 13), (R[1], Q[7], W4, 15), (Q[4], Q[4], W512), (Q[5], Q[5], W512)], pre=[(Q[6], 12), (Q[7], 14)], mf=mfm(0, HA, 2))
readF(HB)
batch([(Q[6], Q[6], W512, 2), (Q[7], Q[7], W512, 3), (R[0], Q[4], W512, 4), (R[1], Q[5], W512, 5)], pre=[(Q[4], 0), (Q[5], 1)])
batch([(Q[6], Q[6], W512, 6), (Q[7], Q[7], W512, 7), (R[0], R[0], W512, 8)], mf=mfm(1, HB, 0))
readF(HA)
f = mfm(1, HB, 2); f(0); f(1)
E(f"s_mul_i32 s48, s67, 3072"); E(f"s_add_u32 s48, s48, {PX0}"); E("v_lshlrev_b32 v34, 4, v0"); E("v_add_u32 v34, s48, v34")
f = mfm(2, HA, 0); f(0); f(1); f = mfm(2, HA, 2); f(0); f(1)
E("s_cmp_lt_u32 s3, 4"); E("s_cbranch_scc0 L_helper")
vmq = None
VKB, VUA, VYW = 8, 9, 5
E("v_lshlrev_b32 v8, 1, v32"); E("v_sub_u32 v8, v33, v8"); E("v_add_u32 v8, 30, v8"); E("v_lshlrev_b32 v8, 4, v8"); E("v_add_u32 v8, s45, v8")
E("v_add_u32 v38, 1, v32"); E("v_and_b32 v35, 7, v38"); E("v_lshrrev_b32 v38, 3, v38"); E("v_add_u32 v38, v38, v33")
E("v_lshlrev_b32 v36, 2, v35"); E("v_lshrrev_b32 v36, v36, s47"); E("v_and_b32 v36, 15, v36")
E("v_add_u32 v38, v38, v36"); E("v_lshlrev_b32 v38, 4, v38"); E(f"v_mul_u32_u24 v9, {CS}, v35"); E("v_add_u32 v9, v9, v38")
E(f"s_mul_i32 s48, s23, {UCH}"); E("v_add_u32 v9, s48, v9")
E("v_lshrrev_b32 v40, 1, v33"); E("v_lshl_add_u32 v40, v40, 4, v32"); E("v_sub_u32 v40, 255, v40"); E("v_lshlrev_b32 v40, 4, v40")
E("v_and_b32 v41, 1, v33"); E("v_xor_b32 v41, 1, v41"); E("v_lshl_add_u32 v40, v41, 3, v40"); E("v_add_u32 v40, s45, v40")
E("v_lshl_add_u32 v44, v33, 4, v32"); E("v_add_u32 v44, 32, v44"); E("v_lshl_add_u32 v45, v33, 5, v32")
E("v_cndmask_b32 v44, v45, v44, s[62:63]")
E("v_lshlrev_b32 v45, 2, v44"); E("v_add_u32 v45, s46, v45")
E("v_sub_u32 v46, 255, v44"); E("v_lshlrev_b32 v46, 4, v46"); E("v_add_u32 v46, s45, v46")
E("v_lshl_add_u32 v47, v33, 6, v32"); E("v_lshlrev_b32 v47, 2, v47"); E("v_add_u32 v47, s46, v47")
E("v_lshlrev_b32 v48, 2, v0"); E("v_add_u32 v48, s46, v48")
E("v_sub_u32 v49, 63, v0"); E("v_lshlrev_b32 v49, 4, v49"); E("v_add_u32 v49, s45, v49")
E("v_and_b32 v50, 1, v0"); E("v_cmp_eq_u32 vcc, 1, v50"); E("v_mov_b32 v51, 0x07060100"); E("v_mov_b32 v50, 0x03020100")
E("v_cndmask_b32 v50, v51, v50, vcc")
E("v_mov_b32 v80, 0x03020100"); E("v_cndmask_b32 v51, v80, v51, s[62:63]")
E("v_bfe_u32 v5, v32, 1, 2"); E("v_xor_b32 v5, v5, v33"); E("v_lshlrev_b32 v5, 4, v5"); E("v_lshl_add_u32 v5, v32, 6, v5")
E(f"s_mul_i32 s61, s3, {YCB}"); E(f"s_add_u32 s61, s61, {Y0}"); E("v_add_u32 v5, s61, v5")
E("v_lshlrev_b32 v10, 2, v0")
E("s_lshl_b32 s61, s3, 11"); E("v_lshlrev_b32 v11, 4, v0"); E("v_add_u32 v11, s61, v11"); E(f"v_add_u32 v12, {G0}, v11")
stamp(2)
E("s_barrier")
PXR = 144
for t_ in (1, 2, 0): E(f"ds_read_b128 {v(PXR+4*t_,4)}, v34 offset:{1024*t_}")
def padd(t_):
    for h in (0, 2): E(f"v_pk_add_f32 {v(DT+4*t_+h,2)}, {v(DT+4*t_+h,2)}, {v(PXR+4*t_+h,2)}")
E("s_waitcnt lgkmcnt(1)"); padd(1); padd(2)
X = DT + 4
E(f"v_cvt_pk_bf16_f32 v55, v{X}, v{X}"); E(f"v_cvt_pk_bf16_f32 v59, v{X+2}, v{X+2}")
for i in range(4): E(f"v_cvt_pk_bf16_f32 v{62+i}, v{DT+8+i}, v{DT+8+i}")
E("ds_write_b32 v45, v55")
E("s_mov_b64 exec, s[58:59]"); E("s_mov_b32 exec_hi, -1")
E("ds_write_b32 v45, v59 offset:64")
E("s_mov_b64 exec, s[56:57]")
for i in range(4): E(f"ds_write_b32 v47, v{62+i} offset:{512+64*i}")
E("ds_read_b32 v52, v45 offset:4"); E("ds_read_b32 v56, v45 offset:68")
E("ds_read2_b32 v[66:67], v48 offset0:128 offset1:129"); E("ds_read2_b32 v[74:75], v48 offset0:192 offset1:193")
E("s_waitcnt lgkmcnt(10)"); padd(0)
E(f"v_cvt_pk_bf16_f32 v42, v{DT+3}, v{DT+2}"); E(f"v_cvt_pk_bf16_f32 v43, v{DT+1}, v{DT}")
E("ds_write_b64 v40, v[42:43]")
E(f"v_cndmask_b32 v60, v{X+1}, v{X+2}, s[62:63]"); E(f"v_cndmask_b32 v61, v{X}, v{X+1}, s[62:63]")
E("v_cvt_pk_bf16_f32 v53, v60, v60"); E("v_cvt_pk_bf16_f32 v54, v60, v61")
E(f"v_cvt_pk_bf16_f32 v57, v{X+3}, v{X+3}"); E(f"v_cvt_pk_bf16_f32 v58, v{X+3}, v{X+2}")
E("s_waitcnt lgkmcnt(3)")
E("v_perm_b32 v52, v57, v52, v51")
E("ds_write_b128 v46, v[52:55]")
E("s_mov_b64 exec, s[58:59]"); E("s_mov_b32 exec_hi, -1")
E("v_subrev_u32 v46, 256, v46")
E("ds_write_b128 v46, v[56:59]")
E("s_mov_b64 exec, s[56:57]")
E("s_waitcnt lgkmcnt(3)")
for (b, o) in ((64, 1024), (72, 0)):
    E(f"v_mov_b32 v{b}, v{b+3}"); E(f"v_perm_b32 v{b+1}, v{b+2}, v{b+3}, v50"); E(f"v_mov_b32 v{b+3}, v{b+2}")
    E(f"ds_write_b128 v49, {v(b,4)} offset:{o}")
E("buffer_load_dword v13, v10, s[16:19], 0 offen sc1")
stamp(3)
ACC = 24; POOL = 40; NSLOT = int(OPT.get('nslot', 52)); MAXFL = int(OPT.get('maxfl', 10)); AHEAD = int(OPT.get('ahead', 12))
seq = []
avail = 0
for ph, tl in enumerate(PHASES):
    k = max(tl) // 2
    newu = 2 * k + 2 > avail
    late = newu and k in LATE and k > 0
    old = avail
    if newu and not late: avail = 2 * k + 2
    seq.append(('bar', avail, ph))
    def part(lo, hi):
        for c in range(8):
            for a in range(lo, hi):
                for P in tl:
                    if a <= P: seq.append(('m', ('A', a, c), ('B', P - a, c), P, ACC + 8 * (ph & 1) + 4 * (P & 1)))
    if late:
        part(0, old); avail = 2 * k + 2; seq.append(('bar', avail, None)); part(old, 8)
    else: part(0, 8)
    seq.append(('y', ph))
uses = {}
for i, it in enumerate(seq):
    if it[0] == 'm':
        for f in it[1:3]: uses.setdefault(f, []).append(i)
def nxt(f, i):
    for u in uses[f]:
        if u >= i: return u
    return 10**9
q = []; slot = {}; free = list(range(NSLOT)); nload = 0
def need(f):
    global q
    if f in q:
        n = len(q) - 1 - q.index(f); assert n <= 15
        E(f"s_waitcnt lgkmcnt({n})"); q = q[len(q) - n:]
def load(f, i, pf):
    global nload
    if not free:
        vic = max(slot, key=lambda g: nxt(g, i))
        if nxt(vic, i) <= pf: return False
        free.append(slot.pop(vic))
    sl = free.pop(0); slot[f] = sl; nload += 1; q.append(f)
    if f[0] == 'A': E(f"ds_read_b128 {v(POOL+4*sl,4)}, v{VUA} offset:{512*f[1]+64*f[2]}")
    else: E(f"ds_read_b128 {v(POOL+4*sl,4)}, v{VKB} offset:{512*(7-f[1])+64*f[2]}")
    return True
cur = 0; pf = 0; started = set()
def prefetch(i, maxn):
    global pf
    n = 0
    while pf < len(seq) and pf <= i + AHEAD:
        it = seq[pf]
        if it[0] == 'm':
            for f in it[1:3]:
                if f not in slot:
                    if (f[0] == 'A' and f[1] >= cur) or len(q) >= MAXFL or n >= maxn: return
                    if not load(f, i, pf): return
                    n += 1
        pf += 1
for it in seq[1:1 + AHEAD]:
    if it[0] == 'm' and it[2] not in slot and len(q) < 8: load(it[2], 0, 0)
nb = 0
for i, it in enumerate(seq):
    if it[0] == 'bar':
        E("s_barrier"); cur = it[1]; stamp(4 + nb); nb += 1
        prefetch(i, 99)
    elif it[0] == 'y':
        ph = it[1]
        if ph == 0:
            E("s_mov_b32 s64, 0"); E("s_mov_b32 s65, 0x01010101")
            Lb("L_poll")
            E("s_waitcnt vmcnt(0)"); E("v_cmp_ne_u32 vcc, s65, v13"); E("s_cbranch_vccz L_pollok")
            E("s_add_u32 s64, s64, 1"); E("s_cmp_gt_u32 s64, 200000"); E("s_cbranch_scc1 L_pollok")
            E("s_sleep 1"); E("buffer_load_dword v13, v10, s[16:19], 0 offen sc1"); E("s_branch L_poll")
            Lb("L_pollok")
            E("buffer_load_dwordx4 v[16:19], v11, s[12:15], 0 offen sc1"); E("buffer_load_dwordx4 v[20:23], v11, s[12:15], 0 offen offset:1024 sc1")
        for P in PHASES[ph]:
            E(f"ds_write_b128 v{VYW}, {v(ACC + 8*(ph&1) + 4*(P&1), 4)} offset:{(ph&1)*YBUF + 1024*(P&1)}"); q.append(None)
        if ph == 0:
            E("s_waitcnt vmcnt(0)"); E("ds_write_b128 v12, v[16:19]"); E("ds_write_b128 v12, v[20:23] offset:1024")
        E("s_waitcnt lgkmcnt(0)"); q = []
    else:
        pf = max(pf, i)
        for f in it[1:3]:
            if f not in slot: assert load(f, i, i - 1)
        need(it[1]); need(it[2])
        P = it[3]; c = v(it[4], 4) if P in started else "0"; started.add(P)
        E(f"v_mfma_f32_16x16x32_bf16 {v(it[4],4)}, {v(POOL+4*slot[it[1]],4)}, {v(POOL+4*slot[it[2]],4)}, {c}")
        for f in it[1:3]:
            if nxt(f, i + 1) >= 10**9 and f in slot: free.append(slot.pop(f))
        prefetch(i + 1, 2)
print("conv loads", nload)
E("s_barrier")
stamp(4 + nb, 14)
E("s_endpgm")
Lb("L_helper")
used.clear(); used.update([0, 1, 15])
vmq = vmq_h
def vmwait(tag):
    idx = max(i for i, t in enumerate(vmq) if t == tag)
    n = len(vmq) - 1 - idx
    E(f"s_waitcnt vmcnt({n})"); del vmq[:idx + 1]
E(f"s_setprio {PRIO}")
RAW = U0 + 16 * (OFF[0] + 2)
E("s_lshl_b32 s35, s67, 8")
E("v_lshlrev_b32 v5, 2, v0"); E("v_add_u32 v5, s35, v5"); E(f"v_add_u32 v5, {RAW}, v5")
for t_ in range(2): E(f"ds_write_b128 v34, {v(DT+4*t_,4)} offset:{1024*t_}")
E("v_and_b32 v6, 7, v0"); E("v_lshlrev_b32 v6, 1, v6"); E("v_add_u32 v6, s35, v6"); E(f"v_add_u32 v6, {RAW-16}, v6")
E(f"ds_write_b128 v34, {v(DT+8,4)} offset:2048")
E("v_and_b32 v7, 15, v0"); E("v_lshlrev_b32 v7, 4, v7"); E("v_add_u32 v7, s35, v7")
E("v_lshrrev_b32 v2, 5, v0"); E(f"v_mul_u32_u24 v2, {UCH}, v2"); E("v_add_u32 v7, v7, v2")
E("s_mov_b32 s40, 0x05040100"); E("s_mov_b32 s41, 0x07060302")
E("s_waitcnt lgkmcnt(0)")
stamp(2)
E("s_barrier")
gathers(99)
def raw(k):
    vmwait(('u', k))
    x, r0, r1 = UR + 3*k, UR + 3*k + 1, UR + 3*k + 2
    E(f"v_perm_b32 v40, v{r1}, v{r0}, s40"); E(f"v_perm_b32 v41, v{r1}, v{r0}, s41")
    E(f"ds_write_b32 v5, v40 offset:{1024*k}"); E(f"ds_write_b32 v5, v41 offset:{1024*k+UCH}")
    E("s_mov_b64 exec, 0xff")
    E(f"ds_write_b16 v6, v{x} offset:{1024*k}"); E(f"ds_write_b16_d16_hi v6, v{x} offset:{1024*k+UCH}")
    E("s_mov_b64 exec, s[56:57]")
def copies(k, first=False):
    raw(k)
    if first:
        E("v_bfe_u32 v2, v0, 4, 1"); E("v_lshl_add_u32 v3, v2, 3, v7"); E(f"v_add_u32 v3, {RAW-16}, v3"); E("v_cmp_eq_u32 vcc, 1, v2")
    for j in range(3): E(f"ds_read_b64 {v(44+2*j,2)}, v3 offset:{1024*k+8*j}")
    if first:
        for j in range(4):
            E(f"v_mov_b32 v{10+j}, {U0 + j*CS + 16*(OFF[j]+1)}"); E(f"v_mov_b32 v14, {U0 + (4+j)*CS + 16*(OFF[4+j]+1)}")
            E(f"v_cndmask_b32 v{10+j}, v{10+j}, v14, vcc"); E(f"v_add_u32 v{10+j}, v{10+j}, v7")
    E("s_waitcnt lgkmcnt(0)")
    E(f"ds_write_b128 v10, v[44:47] offset:{1024*k}")
    for i in range(4): E(f"v_alignbit_b32 v{52+i}, v{45+i}, v{44+i}, 16")
    E(f"ds_write_b128 v11, v[52:55] offset:{1024*k}")
    for i in range(4): E(f"v_mov_b32 v{56+i}, v{45+i}")
    E(f"ds_write_b128 v12, v[56:59] offset:{1024*k}")
    for i in range(4): E(f"v_alignbit_b32 v{60+i}, v{46+i}, v{45+i}, 16")
    E(f"ds_write_b128 v13, v[60:63] offset:{1024*k}")
def episetup():
    E("s_lshl_b32 s42, s67, 9"); E("v_lshlrev_b32 v14, 3, v0"); E("v_add_u32 v14, s42, v14"); E(f"v_add_u32 v15, {G0}, v14")
    E("v_bfe_u32 v2, v14, 7, 2"); E("v_lshlrev_b32 v2, 4, v2"); E("v_xor_b32 v14, v2, v14"); E(f"v_add_u32 v14, {Y0}, v14")
    E("v_mov_b32 v28, s72"); E("v_mov_b32 v29, s73"); unpack(28, 30, 31); unpack(29, 28, 29)
    E("v_pk_add_f32 v[30:31], v[30:31], v[28:29] neg_lo:[0,1] neg_hi:[0,1]")
def epilogue(ph):
    tl = PHASES[ph]; k = tl[0] // 2
    if len(tl) == 1:
        lab[0] += 1; l = f"L_e{lab[0]}"
        E("s_cmp_lt_u32 s67, 2"); E(f"s_cbranch_scc{tl[0] & 1} {l}")
    yb = (ph & 1) * YBUF
    for cb in range(4): E(f"ds_read_b64 {v(64+2*cb,2)}, v14 offset:{yb + cb*YCB}")
    E(f"ds_read_b64 v[72:73], v15 offset:{2048*k}")
    r0, r1 = UR + 3*k + 1, UR + 3*k + 2
    unpack(r0, 74, 76); unpack(r1, 75, 77)
    E("s_waitcnt lgkmcnt(1)")
    SEL = ["op_sel:[0,0,0] op_sel_hi:[1,0,1]", "op_sel:[0,1,0] op_sel_hi:[1,1,1]"]
    for ch in range(2): E(f"v_pk_add_f32 {v(64+2*ch,2)}, {v(64+2*ch,2)}, {v(68+2*ch,2)} neg_lo:[0,1] neg_hi:[0,1]")
    for ch in range(2): E(f"v_pk_fma_f32 {v(68+2*ch,2)}, {v(74+2*ch,2)}, v[28:29], {v(68+2*ch,2)} {SEL[ch]}")
    for ch in range(2): E(f"v_pk_fma_f32 {v(64+2*ch,2)}, {v(74+2*ch,2)}, v[30:31], {v(64+2*ch,2)} {SEL[ch]}")
    E("s_waitcnt lgkmcnt(0)")
    for ch in range(2): E(f"v_pk_fma_f32 {v(64+2*ch,2)}, {v(64+2*ch,2)}, v[72:73], {v(68+2*ch,2)}")
    o = 80 + 2 * k
    E(f"v_cvt_pk_bf16_f32 v{o}, v64, v66"); E(f"v_cvt_pk_bf16_f32 v{o+1}, v65, v67")
    E(f"buffer_store_dword v{o}, v8, s[8:11], s{76+k} offen"); E(f"buffer_store_dword v{o+1}, v8, s[8:11], s{76+k} offen offset:1024")
    if len(tl) == 1: Lb(l)
    else: vmq.extend(['st', 'st'])
bars = [it for it in seq if it[0] == 'bar'] + [('bar', 8, NPH)]
done = 0; nb = 0
for j, b in enumerate(bars):
    if j > 0 and bars[j-1][2] is not None and bars[j-1][2] >= 1: epilogue(bars[j-1][2] - 1)
    gathers(100 + j)
    while done < b[1]:
        copies(done // 2, done == 0); done += 2
    if j == 1: episetup()
    E("s_waitcnt lgkmcnt(0)")
    stamp(3 + nb); nb += 1
    E("s_barrier")
epilogue(NPH - 1)
stamp(3 + nb)
if STAMP:
    E("s_waitcnt vmcnt(0)"); stamp(4 + nb, 14)
Lb("L_end")
E("s_endpgm")

import os; sys.path.insert(0, os.path.dirname(__file__)); import hz
out, ncnt = hz.fix(out, int(OPT.get('hzv', 0))); print('hazard nops', ncnt)
hdr = open('cdna_kernels/%s.s.ref' % NAME).read().split('\n')
hdr = [l for l in hdr if l.startswith(';') and '@launch' not in l and l.startswith('; ') ]
txt = '\n'.join(hdr[:22]) + f"\n; @launch grid=(256,1,1) block=(512,1,1) lds={LDS}\n"
txt += f""".amdgcn_target "amdgcn-amd-amdhsa--gfx950"
.text
.globl {NAME}_kernel
.p2align 8
.type {NAME}_kernel,@function
{NAME}_kernel:
""" + '\n'.join(out) + f"""
.section .rodata,"a"
.p2align 6
.amdhsa_kernel {NAME}_kernel
  .amdhsa_next_free_vgpr 256
  .amdhsa_next_free_sgpr 102
  .amdhsa_accum_offset 256
  .amdhsa_group_segment_fixed_size 0
  .amdhsa_kernarg_size 160
  .amdhsa_user_sgpr_count 2
  .amdhsa_user_sgpr_kernarg_segment_ptr 1
  .amdhsa_system_sgpr_workgroup_id_x 1
.end_amdhsa_kernel
"""
open(sys.argv[1], 'w').write(txt)
print("LDS", LDS, "lines", len(out))
```

```python
import sys, math, struct
NAME = "gated_mix__ssm_conv_s4d__ssm_conv_s4__prompt"
OPT = dict(a.split('=') for a in sys.argv[2:] if '=' in a)
STAMP = int(OPT.get('stamp', 0))
PHASES = eval(OPT.get('phases', '[[0,1],[2,3],[4,5],[6],[7]]'))
NPH = len(PHASES)
out = []
def E(s): out.append("    " + s)
def Lb(s): out.append(s + ":")
def f2u(x): return struct.unpack('<I', struct.pack('<f', x))[0]
def v(i, n=1): return f"v{i}" if n == 1 else f"v[{i}:{i+n-1}]"
def s(i, n=1): return f"s{i}" if n == 1 else f"s[{i}:{i+n-1}]"
def nop(n):
    if n > 0: E(f"s_nop {n-1}")

LATE = eval(OPT.get('late', '[2,3]'))
GPOS = eval(OPT.get('gpos', '[0,2,9,14,99,101,102,103]'))
GF = eval(OPT.get('gf', '[6,8]'))
PRIO = int(OPT.get('prio', 3))
OFF = [12, 3, 7, 6, 10, 12, 1, 0]
CS = 272 * 16
UCH = 8 * CS
U0 = 0
KR0 = 2 * UCH; KRS = 288 * 16
E0 = KR0 + 4 * KRS; ES = 288; EW = 16 * ES
Y0 = E0; YCB = 2048; YBUF = 4 * YCB
G0 = E0 + 2 * YBUF
PX0 = E0 + 8 * EW
CNT = PX0 + 4 * 3072
LDS = CNT + 16
offc = 0
for i, o in enumerate(OFF): offc |= o << (4 * i)
SREG = {**{k: 80 + 2 * k for k in range(9)}, 15: 98, 14: 100, 9: 28, 10: 30, 11: 32, 12: 36, 13: 38}
used = set()
def stamp(k, real=None):
    if not STAMP: return
    E(f"s_memtime s[{SREG[k]}:{SREG[k]+1}]"); used.add(k)
    if real is not None: E(f"s_memrealtime s[{SREG[real]}:{SREG[real]+1}]"); used.add(real)
    if real == 14:
        E("s_waitcnt lgkmcnt(0)")
        E("s_lshl_b32 s20, s2, 3"); E("s_add_u32 s20, s20, s3"); E("s_lshl_b32 s20, s20, 6"); E("s_add_u32 s20, s20, 0x100000"); E("v_mov_b32 v251, s20")
        for j in sorted(used):
            E(f"v_mov_b32 v250, s{SREG[j]}"); E(f"buffer_store_dword v250, v251, s[12:15], 0 offen offset:{4*j}")
vmq = None
lab = [0]
def role(helper):
    lab[0] += 1; l = f"L_r{lab[0]}"
    E("s_cmp_lt_u32 s3, 4"); E(f"s_cbranch_scc{1 if helper else 0} {l}")
    return l
def unpack(src, lo, hi):
    E(f"v_lshlrev_b32 v{lo}, 16, v{src}"); E(f"v_and_b32 v{hi}, 0xffff0000, v{src}")
E("s_cmp_ge_u32 s2, 256"); E("s_cbranch_scc1 L_end")
E("s_load_dwordx2 s[4:5], s[0:1], 0")
E("s_load_dwordx4 s[8:11], s[0:1], 136")
E("s_load_dwordx2 s[12:13], s[0:1], 152")
E("v_lshrrev_b32 v1, 6, v0"); E("v_and_b32 v0, 63, v0")
E("v_readfirstlane_b32 s3, v1")
E("s_load_dwordx2 s[42:43], s[0:1], 128")
E("s_load_dwordx2 s[68:69], s[0:1], 48"); E("s_load_dwordx2 s[70:71], s[0:1], 120")
E("s_bfe_u32 s24, s3, 0x10001"); E("s_cmp_eq_u32 s24, 0"); E("s_cbranch_scc0 L_ptrB")
E("s_load_dwordx4 s[28:31], s[0:1], 8"); E("s_load_dwordx4 s[36:39], s[0:1], 24")
E("s_load_dwordx2 s[40:41], s[0:1], 40"); E("s_load_dwordx4 s[32:35], s[0:1], 8")
E("s_branch L_ptrdone")
Lb("L_ptrB")
E("s_load_dwordx4 s[28:31], s[0:1], 64"); E("s_load_dwordx4 s[32:35], s[0:1], 80")
E("s_load_dwordx4 s[36:39], s[0:1], 96"); E("s_load_dwordx2 s[40:41], s[0:1], 112")
Lb("L_ptrdone")
E("s_and_b32 s20, s2, 7"); E("s_lshr_b32 s21, s2, 3")
E("s_lshl_b32 s20, s20, 5"); E("s_add_u32 s20, s20, s21"); E("s_lshl_b32 s22, s20, 2")
E("s_and_b32 s23, s3, 1"); E("s_lshr_b32 s66, s3, 2"); E("s_and_b32 s67, s3, 3")
E("s_lshl_b32 s25, s20, 1"); E("s_add_u32 s25, s25, s23"); E("s_lshl_b32 s25, s25, 8"); E("s_lshl_b32 s26, s66, 7"); E("s_add_u32 s25, s25, s26")
E("v_lshlrev_b32 v2, 1, v0"); E("v_add_u32 v2, s25, v2")
for i in range(10, 16): E(f"v_mov_b32 v{i}, 0")
E("s_lshl_b32 s26, s2, 3"); E("s_lshl_b32 s27, s3, 1"); E("s_add_u32 s26, s26, s27"); E("s_lshl_b32 s26, s26, 10")
E("v_lshlrev_b32 v3, 4, v0"); E("v_add_u32 v4, s26, v3")
E("s_lshl_b32 s26, s21, 6"); E("s_lshl_b32 s27, s67, 4"); E("s_add_u32 s26, s26, s27")
E("v_and_b32 v1, 15, v0"); E("v_add_u32 v1, s26, v1"); E("v_lshlrev_b32 v1, 10, v1"); E("v_add_u32 v1, s22, v1")
E("s_waitcnt lgkmcnt(0)")
E("s_mov_b32 s16, s10"); E("s_mov_b32 s17, s11")
E("s_mov_b32 s6, 0x200000"); E("s_mov_b32 s7, 0x20000"); E("s_mov_b32 s10, 0x200000"); E("s_mov_b32 s11, 0x20000")
E("s_mov_b32 s14, 0x200000"); E("s_mov_b32 s15, 0x20000"); E("s_mov_b32 s18, 256"); E("s_mov_b32 s19, 0x20000")
E("s_load_dword s44, s[40:41], s22"); E("s_load_dword s72, s[68:69], s22"); E("s_load_dword s73, s[70:71], s22")
for r, p in ((10, 28), (11, 30), (12, 36), (13, 38), (14, 32), (15, 34)):
    E(f"global_load_short_d16_hi v{r}, v2, s[{p}:{p+1}]")
l = role(False)
E("buffer_load_dwordx4 v[16:19], v4, s[4:7], 0 offen"); E("buffer_load_dwordx4 v[20:23], v4, s[4:7], 0 offen offset:1024")
E("global_load_dwordx4 v[24:27], v3, s[42:43]")
Lb(l)
l = role(True)
E("buffer_load_dword v1, v1, s[4:7], 0 offen")
Lb(l)
stamp(0, 15)
E(f"s_mul_i32 s45, s67, {KRS}"); E(f"s_add_u32 s45, s45, {KR0}")
E(f"s_mul_i32 s46, s3, {EW}"); E(f"s_add_u32 s46, s46, {E0}")
E(f"s_mov_b32 s47, {offc}")
for i in range(4): E(f"v_mov_b32 v{28+i}, 0")
E("v_and_b32 v5, 31, v0"); E("v_lshlrev_b32 v5, 4, v5"); E("v_add_u32 v5, s45, v5"); E("ds_write_b128 v5, v[28:31] offset:4096")
E("v_and_b32 v5, 7, v0"); E("v_lshlrev_b32 v6, 2, v5"); E("v_lshrrev_b32 v6, v6, s47"); E("v_and_b32 v6, 15, v6")
E("v_lshlrev_b32 v6, 4, v6"); E(f"v_mul_u32_u24 v5, {CS}, v5"); E("v_add_u32 v5, v5, v6")
E("v_bfe_u32 v6, v0, 3, 1"); E(f"v_mul_u32_u24 v6, {UCH}, v6"); E("v_add_u32 v5, v5, v6")
E("ds_write_b128 v5, v[28:31]")
E(f"v_mov_b32 v5, {CNT}"); E("ds_write_b32 v5, v28")
VEW, VER = 6, 7
E("v_lshlrev_b32 v6, 2, v0"); E("v_add_u32 v6, s46, v6")
E("v_and_b32 v32, 15, v0"); E("v_lshrrev_b32 v33, 4, v0")
E(f"v_mul_u32_u24 v7, {ES}, v32"); E("v_lshl_add_u32 v7, v33, 4, v7"); E("v_add_u32 v7, s46, v7")
E("v_lshlrev_b32 v8, 11, v0"); E("v_add_u32 v8, s22, v8")
E("v_and_b32 v9, 7, v0"); E("v_lshlrev_b32 v9, 10, v9"); E("v_add_u32 v9, s22, v9"); E("v_subrev_u32 v9, 0x2000, v9")
E("s_lshl_b32 s74, s67, 17")
for k in range(4): E(f"s_add_u32 s{76+k}, s74, {k * 512 * 1024}")
E("s_mov_b64 s[56:57], exec"); E("s_mov_b32 s58, 0"); E("s_mov_b32 s59, 0x80000000"); E("s_mov_b32 s62, -1"); E("s_mov_b32 s63, 0")
E("s_waitcnt lgkmcnt(0)"); E("s_barrier")
E("s_lshl_b32 s49, s44, 16"); E("s_and_b32 s50, s44, 0xffff0000"); E("s_cmp_eq_u32 s23, 0"); E("s_cselect_b32 s49, s49, s50")
E(f"s_mov_b32 s51, {f2u(1.4426950408889634)}"); E("v_mov_b32 v37, s49"); E("v_mul_f32 v37, s51, v37"); E("v_exp_f32 v37, v37")
E("v_cvt_pk_bf16_f32 v37, v37, v37"); E("v_and_b32 v37, 0xffff0000, v37")
E("s_waitcnt vmcnt(0)")
stamp(1)
UR = 16
vmq_h = []
def gather_h(r):
    k, j = r // 2, r & 1
    if j == 0:
        E(f"buffer_load_dword v{UR+3*k+1}, v8, s[4:7], s{76+k} offen"); vmq_h.append(('u', k))
    else:
        E(f"v_add_u32 v4, s{76+k}, v9")
        E(f"buffer_load_dword v{UR+3*k+2}, v8, s[4:7], s{76+k} offen offset:1024")
        E("s_mov_b64 exec, 0xff"); E(f"buffer_load_dword v{UR+3*k}, v4, s[4:7], 0 offen"); E("s_mov_b64 exec, s[56:57]")
        vmq_h.extend([('u', k)] * 2)
def gathers(pos):
    rs = [r for r in range(8) if GPOS[r] == pos]
    if rs and pos < 99: l = role(True)
    for r in rs: gather_h(r)
    if rs and pos < 99: Lb(l)
vmq = vmq_h
gathers(0)
l = role(False)
for rr in range(2): E(f"v_mov_b32 v{28+rr}, 0")
for j in range(4):
    for rr in range(2): E(f"v_dot2_f32_bf16 v{28+rr}, v{16+4*rr+j}, v{24+j}, v{28+rr}")
for dpp in ("row_shr:1 row_mask:0xf", "row_shr:2 row_mask:0xf", "row_shr:4 row_mask:0xf", "row_shr:8 row_mask:0xf", "row_bcast:15 row_mask:0xa", "row_bcast:31 row_mask:0xc"):
    for rr in range(2): E(f"v_add_f32_dpp v{28+rr}, v{28+rr}, v{28+rr} {dpp} bank_mask:0xf")
E("v_cvt_pk_bf16_f32 v30, v28, v29"); unpack(30, 28, 29)
for rr in range(2): E(f"v_mul_f32 v{28+rr}, s51, v{28+rr}")
for rr in range(2): E(f"v_exp_f32 v{28+rr}, -v{28+rr}")
for rr in range(2): E(f"v_add_f32 v{28+rr}, 1.0, v{28+rr}")
for rr in range(2): E(f"v_rcp_f32 v{28+rr}, v{28+rr}")
E("s_lshl_b32 s54, s2, 5"); E("s_lshl_b32 s55, s3, 3"); E("s_add_u32 s54, s54, s55"); E("v_mov_b32 v31, s54")
E("v_cvt_pk_bf16_f32 v30, v28, v29"); unpack(30, 28, 29)
E("s_mov_b64 exec, s[58:59]")
E("buffer_store_dwordx2 v[28:29], v31, s[12:15], 0 offen sc1")
E("s_mov_b64 exec, s[56:57]")
Lb(l)
E("s_cmp_eq_u32 s24, 0"); E("s_cbranch_scc0 L_parB")
E("v_mul_f32 v10, s51, v10"); E("v_exp_f32 v10, v10"); E("v_add_f32 v14, v37, v37"); E("v_mov_b32 v15, 0")
E("v_cvt_pk_bf16_f32 v10, v10, v10"); E("v_and_b32 v10, 0xffff0000, v10"); E("v_xor_b32 v10, 0x80000000, v10")
E("s_branch L_pardone")
Lb("L_parB")
E("v_mul_f32 v14, v37, v14"); E("v_mul_f32 v15, v37, v15")
Lb("L_pardone")
W1, W2, W4, W8, W16, W24, W32, W128, W256, W512 = [40 + 2 * i for i in range(10)]
Q = [60 + 2 * i for i in range(8)]; R = [76 + 2 * i for i in range(4)]; T = [84 + 2 * i for i in range(4)]
LF, HA, DT, HB = 96, 112, 128, 140
E("v_mul_f32 v10, v37, v10"); E("v_mul_f32 v11, v37, v11")
E("v_mul_f32 v10, s51, v10"); E("v_mul_f32 v11, 0.15915494, v11")
E("v_mul_f32 v34, 0x43000000, v10"); E("v_mul_f32 v35, 0x43000000, v11")
E("v_fract_f32 v11, v11"); E("v_fract_f32 v35, v35")
E("v_exp_f32 v10, v10"); E("v_exp_f32 v34, v34")
E(f"v_cos_f32 v{W1}, v11"); E(f"v_sin_f32 v{W1+1}, v11"); E(f"v_cos_f32 v{W128}, v35"); E(f"v_sin_f32 v{W128+1}, v35")
ct = [0]
def put(src, row, conj=False):
    t = 92 + ct[0]; ct[0] = (ct[0] + 1) % 4
    E(f"v_cvt_pk_bf16_f32 v{t}, v{src}, {'-' if conj else ''}v{src+1}")
    E(f"ds_write_b32 v{VEW}, v{t} offset:{row*ES}"); dsn[0] += 1
dsn = [0]
bi = [0]; gfc = [0]
def batch(items, pre=(), conj=False, mf=None):
    bi[0] += 1
    gathers(bi[0])
    for k, it in enumerate(items): E(f"v_pk_mul_f32 {v(T[k],2)}, {v(it[1],2)}, {v(it[2],2)} op_sel:[0,0] op_sel_hi:[0,1]")
    for (sr, row) in pre[:len(pre)//2]: put(sr, row, conj)
    if mf: mf(0)
    for k, it in enumerate(items): E(f"v_pk_fma_f32 {v(it[0],2)}, {v(it[1],2)}, {v(it[2],2)}, {v(T[k],2)} op_sel:[1,1,0] op_sel_hi:[1,0,1] neg_lo:[0,1,0]")
    for (sr, row) in pre[len(pre)//2:]: put(sr, row, conj)
    if mf: mf(1)
    for it in items:
        if len(it) > 3: put(it[0], it[3], conj)
    if bi[0] == GF[0]:
        l = role(False)
        E("s_waitcnt vmcnt(0)")
        E(f"v_mov_b32 v30, {CNT}"); E("v_mov_b32 v31, 1")
        E("s_mov_b64 exec, 1"); E("ds_add_rtn_u32 v29, v30, v31"); E("s_mov_b64 exec, s[56:57]")
        sv = vmq_h[:]; stamp(12); vmq_h[:] = sv
        Lb(l); gfc[0] = len(out)
    if bi[0] == GF[1]:
        n = sum(1 for x in out[gfc[0]:] if x.strip().startswith('ds_'))
        l = role(False)
        E(f"s_waitcnt lgkmcnt({min(n, 15)})")
        E("v_readfirstlane_b32 s60, v29")
        E("s_cmp_eq_u32 s60, 3"); E(f"s_cbranch_scc0 {l}")
        E("v_mov_b32 v30, s2"); E("s_mov_b64 exec, 1")
        E("buffer_store_byte v31, v30, s[16:19], 0 offen sc1")
        E("s_mov_b64 exec, s[56:57]")
        Lb(l)
def readF(base):
    for ks in range(4): E(f"ds_read_b128 {v(base+4*ks,4)}, v{VER} offset:{64*ks}")
    dsn[0] = 0
def mfm(tile, hf, k0):
    def f(j):
        ks = k0 + j
        if ks == 0: E(f"s_waitcnt lgkmcnt({dsn[0]})")
        c = "0" if ks == 0 else v(DT+4*tile, 4)
        E(f"v_mfma_f32_16x16x32_bf16 {v(DT+4*tile,4)}, {v(hf+4*ks,4)}, {v(LF+4*ks,4)}, {c}")
    return f
E(f"v_pk_mul_f32 {v(T[0],2)}, v[12:13], v[14:15] op_sel:[0,0] op_sel_hi:[0,1]")
E(f"v_pk_mul_f32 {v(W1,2)}, {v(W1,2)}, v[10:11] op_sel_hi:[1,0]"); E(f"v_pk_mul_f32 {v(W128,2)}, {v(W128,2)}, v[34:35] op_sel_hi:[1,0]")
E(f"v_pk_fma_f32 {v(Q[0],2)}, v[12:13], v[14:15], {v(T[0],2)} op_sel:[1,1,0] op_sel_hi:[1,0,1] neg_lo:[0,1,0]")
batch([(W2, W1, W1), (W256, W128, W128), (Q[1], Q[0], W128, 8), (R[0], Q[0], W1, 1)], pre=[(Q[0], 0)])
batch([(W4, W2, W2), (W512, W256, W256), (R[1], Q[1], W1, 9), (Q[2], Q[0], W256)])
batch([(R[2], Q[0], W2, 2), (R[0], R[0], W2, 3), (R[3], Q[1], W2, 10), (R[1], R[1], W2, 11)])
batch([(W8, W4, W4), (Q[3], Q[1], W256), (Q[4], Q[0], W512), (Q[5], Q[1], W512)])
batch([(R[2], R[2], W2, 4), (R[0], R[0], W2, 5), (R[3], R[3], W2, 12), (R[1], R[1], W2, 13)])
batch([(W16, W8, W8), (Q[6], Q[2], W512), (Q[7], Q[3], W512)])
batch([(R[2], R[2], W2, 6), (R[0], R[0], W2, 7), (R[3], R[3], W2, 14), (R[1], R[1], W2, 15)])
readF(HA)
E("v_mov_b32 v36, 0x3f80"); E(f"ds_write_b32 v{VEW}, v36")
batch([(W24, W16, W8, 3), (W32, W16, W16, 4)], pre=[(W8, 1), (W16, 2)], conj=True)
batch([(R[1], W8, W32, 5), (R[2], W16, W32, 6), (R[3], W24, W32, 7), (R[0], W32, W32, 8)], conj=True)
batch([(R[1], R[1], W32, 9), (R[2], R[2], W32, 10), (R[3], R[3], W32, 11), (R[0], R[0], W32, 12)], conj=True)
batch([(R[1], R[1], W32, 13), (R[2], R[2], W32, 14), (R[3], R[3], W32, 15)], conj=True)
readF(LF)
batch([(R[0], Q[2], W2, 1), (R[1], Q[3], W2, 5), (R[2], Q[2], W4, 2), (R[3], Q[3], W4, 6)], pre=[(Q[2], 0), (Q[3], 4)])
batch([(R[2], R[2], W2, 3), (R[3], R[3], W2, 7), (R[0], Q[4], W4, 9), (R[1], Q[5], W4, 11)], pre=[(Q[4], 8), (Q[5], 10)], mf=mfm(0, HA, 0))
batch([(R[0], Q[6], W4, 13), (R[1], Q[7], W4, 15), (Q[4], Q[4], W512), (Q[5], Q[5], W512)], pre=[(Q[6], 12), (Q[7], 14)], mf=mfm(0, HA, 2))
readF(HB)
batch([(Q[6], Q[6], W512, 2), (Q[7], Q[7], W512, 3), (R[0], Q[4], W512, 4), (R[1], Q[5], W512, 5)], pre=[(Q[4], 0), (Q[5], 1)])
batch([(Q[6], Q[6], W512, 6), (Q[7], Q[7], W512, 7), (R[0], R[0], W512, 8)], mf=mfm(1, HB, 0))
readF(HA)
f = mfm(1, HB, 2); f(0); f(1)
E(f"s_mul_i32 s48, s67, 3072"); E(f"s_add_u32 s48, s48, {PX0}"); E("v_lshlrev_b32 v34, 4, v0"); E("v_add_u32 v34, s48, v34")
f = mfm(2, HA, 0); f(0); f(1); f = mfm(2, HA, 2); f(0); f(1)
E("s_cmp_lt_u32 s3, 4"); E("s_cbranch_scc0 L_helper")
vmq = None
VKB, VUA, VYW = 8, 9, 5
E("v_lshlrev_b32 v8, 1, v32"); E("v_sub_u32 v8, v33, v8"); E("v_add_u32 v8, 30, v8"); E("v_lshlrev_b32 v8, 4, v8"); E("v_add_u32 v8, s45, v8")
E("v_add_u32 v38, 1, v32"); E("v_and_b32 v35, 7, v38"); E("v_lshrrev_b32 v38, 3, v38"); E("v_add_u32 v38, v38, v33")
E("v_lshlrev_b32 v36, 2, v35"); E("v_lshrrev_b32 v36, v36, s47"); E("v_and_b32 v36, 15, v36")
E("v_add_u32 v38, v38, v36"); E("v_lshlrev_b32 v38, 4, v38"); E(f"v_mul_u32_u24 v9, {CS}, v35"); E("v_add_u32 v9, v9, v38")
E(f"s_mul_i32 s48, s23, {UCH}"); E("v_add_u32 v9, s48, v9")
E("v_lshrrev_b32 v40, 1, v33"); E("v_lshl_add_u32 v40, v40, 4, v32"); E("v_sub_u32 v40, 255, v40"); E("v_lshlrev_b32 v40, 4, v40")
E("v_and_b32 v41, 1, v33"); E("v_xor_b32 v41, 1, v41"); E("v_lshl_add_u32 v40, v41, 3, v40"); E("v_add_u32 v40, s45, v40")
E("v_lshl_add_u32 v44, v33, 4, v32"); E("v_add_u32 v44, 32, v44"); E("v_lshl_add_u32 v45, v33, 5, v32")
E("v_cndmask_b32 v44, v45, v44, s[62:63]")
E("v_lshlrev_b32 v45, 2, v44"); E("v_add_u32 v45, s46, v45")
E("v_sub_u32 v46, 255, v44"); E("v_lshlrev_b32 v46, 4, v46"); E("v_add_u32 v46, s45, v46")
E("v_lshl_add_u32 v47, v33, 6, v32"); E("v_lshlrev_b32 v47, 2, v47"); E("v_add_u32 v47, s46, v47")
E("v_lshlrev_b32 v48, 2, v0"); E("v_add_u32 v48, s46, v48")
E("v_sub_u32 v49, 63, v0"); E("v_lshlrev_b32 v49, 4, v49"); E("v_add_u32 v49, s45, v49")
E("v_and_b32 v50, 1, v0"); E("v_cmp_eq_u32 vcc, 1, v50"); E("v_mov_b32 v51, 0x07060100"); E("v_mov_b32 v50, 0x03020100")
E("v_cndmask_b32 v50, v51, v50, vcc")
E("v_mov_b32 v80, 0x03020100"); E("v_cndmask_b32 v51, v80, v51, s[62:63]")
E("v_bfe_u32 v5, v32, 1, 2"); E("v_xor_b32 v5, v5, v33"); E("v_lshlrev_b32 v5, 4, v5"); E("v_lshl_add_u32 v5, v32, 6, v5")
E(f"s_mul_i32 s61, s3, {YCB}"); E(f"s_add_u32 s61, s61, {Y0}"); E("v_add_u32 v5, s61, v5")
E("v_lshlrev_b32 v10, 2, v0")
E("s_lshl_b32 s61, s3, 11"); E("v_lshlrev_b32 v11, 4, v0"); E("v_add_u32 v11, s61, v11"); E(f"v_add_u32 v12, {G0}, v11")
stamp(2)
E("s_barrier")
PXR = 144
for t_ in (1, 2, 0): E(f"ds_read_b128 {v(PXR+4*t_,4)}, v34 offset:{1024*t_}")
def padd(t_):
    for h in range(4): E(f"v_add_f32 v{DT+4*t_+h}, v{DT+4*t_+h}, v{PXR+4*t_+h}")
E("s_waitcnt lgkmcnt(1)"); padd(1); padd(2)
X = DT + 4
E(f"v_cvt_pk_bf16_f32 v55, v{X}, v{X}"); E(f"v_cvt_pk_bf16_f32 v59, v{X+2}, v{X+2}")
for i in range(4): E(f"v_cvt_pk_bf16_f32 v{62+i}, v{DT+8+i}, v{DT+8+i}")
E("ds_write_b32 v45, v55")
E("s_mov_b64 exec, s[58:59]"); E("s_mov_b32 exec_hi, -1")
E("ds_write_b32 v45, v59 offset:64")
E("s_mov_b64 exec, s[56:57]")
for i in range(4): E(f"ds_write_b32 v47, v{62+i} offset:{512+64*i}")
E("ds_read_b32 v52, v45 offset:4"); E("ds_read_b32 v56, v45 offset:68")
E("ds_read2_b32 v[66:67], v48 offset0:128 offset1:129"); E("ds_read2_b32 v[74:75], v48 offset0:192 offset1:193")
E("s_waitcnt lgkmcnt(10)"); padd(0)
E(f"v_cvt_pk_bf16_f32 v42, v{DT+3}, v{DT+2}"); E(f"v_cvt_pk_bf16_f32 v43, v{DT+1}, v{DT}")
E("ds_write_b64 v40, v[42:43]")
E(f"v_cndmask_b32 v60, v{X+1}, v{X+2}, s[62:63]"); E(f"v_cndmask_b32 v61, v{X}, v{X+1}, s[62:63]")
E("v_cvt_pk_bf16_f32 v53, v60, v60"); E("v_cvt_pk_bf16_f32 v54, v60, v61")
E(f"v_cvt_pk_bf16_f32 v57, v{X+3}, v{X+3}"); E(f"v_cvt_pk_bf16_f32 v58, v{X+3}, v{X+2}")
E("s_waitcnt lgkmcnt(3)")
E("v_perm_b32 v52, v57, v52, v51")
E("ds_write_b128 v46, v[52:55]")
E("s_mov_b64 exec, s[58:59]"); E("s_mov_b32 exec_hi, -1")
E("v_subrev_u32 v46, 256, v46")
E("ds_write_b128 v46, v[56:59]")
E("s_mov_b64 exec, s[56:57]")
E("s_waitcnt lgkmcnt(3)")
for (b, o) in ((64, 1024), (72, 0)):
    E(f"v_mov_b32 v{b}, v{b+3}"); E(f"v_perm_b32 v{b+1}, v{b+2}, v{b+3}, v50"); E(f"v_mov_b32 v{b+3}, v{b+2}")
    E(f"ds_write_b128 v49, {v(b,4)} offset:{o}")
E("buffer_load_dword v13, v10, s[16:19], 0 offen sc1")
stamp(3)
ACC = 24; POOL = 40; NSLOT = int(OPT.get('nslot', 52)); MAXFL = int(OPT.get('maxfl', 10)); AHEAD = int(OPT.get('ahead', 12))
seq = []
avail = 0
for ph, tl in enumerate(PHASES):
    k = max(tl) // 2
    newu = 2 * k + 2 > avail
    late = newu and k in LATE and k > 0
    old = avail
    if newu and not late: avail = 2 * k + 2
    seq.append(('bar', avail, ph))
    def part(lo, hi):
        for c in range(8):
            for a in range(lo, hi):
                for P in tl:
                    if a <= P: seq.append(('m', ('A', a, c), ('B', P - a, c), P, ACC + 8 * (ph & 1) + 4 * (P & 1)))
    if late:
        part(0, old); avail = 2 * k + 2; seq.append(('bar', avail, None)); part(old, 8)
    else: part(0, 8)
    seq.append(('y', ph))
uses = {}
for i, it in enumerate(seq):
    if it[0] == 'm':
        for f in it[1:3]: uses.setdefault(f, []).append(i)
def nxt(f, i):
    for u in uses[f]:
        if u >= i: return u
    return 10**9
q = []; slot = {}; free = list(range(NSLOT)); nload = 0
def need(f):
    global q
    if f in q:
        n = len(q) - 1 - q.index(f); assert n <= 15
        E(f"s_waitcnt lgkmcnt({n})"); q = q[len(q) - n:]
def load(f, i, pf):
    global nload
    if not free:
        vic = max(slot, key=lambda g: nxt(g, i))
        if nxt(vic, i) <= pf: return False
        free.append(slot.pop(vic))
    sl = free.pop(0); slot[f] = sl; nload += 1; q.append(f)
    if f[0] == 'A': E(f"ds_read_b128 {v(POOL+4*sl,4)}, v{VUA} offset:{512*f[1]+64*f[2]}")
    else: E(f"ds_read_b128 {v(POOL+4*sl,4)}, v{VKB} offset:{512*(7-f[1])+64*f[2]}")
    return True
cur = 0; pf = 0; started = set()
def prefetch(i, maxn):
    global pf
    n = 0
    while pf < len(seq) and pf <= i + AHEAD:
        it = seq[pf]
        if it[0] == 'm':
            for f in it[1:3]:
                if f not in slot:
                    if (f[0] == 'A' and f[1] >= cur) or len(q) >= MAXFL or n >= maxn: return
                    if not load(f, i, pf): return
                    n += 1
        pf += 1
for it in seq[1:1 + AHEAD]:
    if it[0] == 'm' and it[2] not in slot and len(q) < 8: load(it[2], 0, 0)
nb = 0
for i, it in enumerate(seq):
    if it[0] == 'bar':
        E("s_barrier"); cur = it[1]; stamp(4 + nb); nb += 1
        prefetch(i, 99)
    elif it[0] == 'y':
        ph = it[1]
        if ph == 0:
            E("s_mov_b32 s64, 0"); E("s_mov_b32 s65, 0x01010101")
            Lb("L_poll")
            E("s_waitcnt vmcnt(0)"); E("v_cmp_ne_u32 vcc, s65, v13"); E("s_cbranch_vccz L_pollok")
            E("s_add_u32 s64, s64, 1"); E("s_cmp_gt_u32 s64, 200000"); E("s_cbranch_scc1 L_pollok")
            E("s_sleep 1"); E("buffer_load_dword v13, v10, s[16:19], 0 offen sc1"); E("s_branch L_poll")
            Lb("L_pollok")
            E("buffer_load_dwordx4 v[16:19], v11, s[12:15], 0 offen sc1"); E("buffer_load_dwordx4 v[20:23], v11, s[12:15], 0 offen offset:1024 sc1")
        for P in PHASES[ph]:
            E(f"ds_write_b128 v{VYW}, {v(ACC + 8*(ph&1) + 4*(P&1), 4)} offset:{(ph&1)*YBUF + 1024*(P&1)}"); q.append(None)
        if ph == 0:
            E("s_waitcnt vmcnt(0)"); E("ds_write_b128 v12, v[16:19]"); E("ds_write_b128 v12, v[20:23] offset:1024")
        E("s_waitcnt lgkmcnt(0)"); q = []
    else:
        pf = max(pf, i)
        for f in it[1:3]:
            if f not in slot: assert load(f, i, i - 1)
        need(it[1]); need(it[2])
        P = it[3]; c = v(it[4], 4) if P in started else "0"; started.add(P)
        E(f"v_mfma_f32_16x16x32_bf16 {v(it[4],4)}, {v(POOL+4*slot[it[1]],4)}, {v(POOL+4*slot[it[2]],4)}, {c}")
        for f in it[1:3]:
            if nxt(f, i + 1) >= 10**9 and f in slot: free.append(slot.pop(f))
        prefetch(i + 1, 2)
print("conv loads", nload)
E("s_barrier")
stamp(4 + nb, 14)
E("s_endpgm")
Lb("L_helper")
used.clear(); used.update([0, 1, 15])
vmq = vmq_h
def vmwait(tag):
    idx = max(i for i, t in enumerate(vmq) if t == tag)
    n = len(vmq) - 1 - idx
    E(f"s_waitcnt vmcnt({n})"); del vmq[:idx + 1]
E(f"s_setprio {PRIO}")
RAW = U0 + 16 * (OFF[0] + 2)
E("s_lshl_b32 s35, s67, 8")
E("v_lshlrev_b32 v5, 2, v0"); E("v_add_u32 v5, s35, v5"); E(f"v_add_u32 v5, {RAW}, v5")
for t_ in range(2): E(f"ds_write_b128 v34, {v(DT+4*t_,4)} offset:{1024*t_}")
E("v_and_b32 v6, 7, v0"); E("v_lshlrev_b32 v6, 1, v6"); E("v_add_u32 v6, s35, v6"); E(f"v_add_u32 v6, {RAW-16}, v6")
E(f"ds_write_b128 v34, {v(DT+8,4)} offset:2048")
E("v_and_b32 v7, 15, v0"); E("v_lshlrev_b32 v7, 4, v7"); E("v_add_u32 v7, s35, v7")
E("v_lshrrev_b32 v2, 5, v0"); E(f"v_mul_u32_u24 v2, {UCH}, v2"); E("v_add_u32 v7, v7, v2")
E("s_mov_b32 s40, 0x05040100"); E("s_mov_b32 s41, 0x07060302")
E("s_waitcnt lgkmcnt(0)")
stamp(2)
E("s_barrier")
gathers(99)
def raw(k):
    vmwait(('u', k))
    x, r0, r1 = UR + 3*k, UR + 3*k + 1, UR + 3*k + 2
    E(f"v_perm_b32 v40, v{r1}, v{r0}, s40"); E(f"v_perm_b32 v41, v{r1}, v{r0}, s41")
    E(f"ds_write_b32 v5, v40 offset:{1024*k}"); E(f"ds_write_b32 v5, v41 offset:{1024*k+UCH}")
    E("s_mov_b64 exec, 0xff")
    E(f"ds_write_b16 v6, v{x} offset:{1024*k}"); E(f"ds_write_b16_d16_hi v6, v{x} offset:{1024*k+UCH}")
    E("s_mov_b64 exec, s[56:57]")
def copies(k, first=False):
    raw(k)
    if first:
        E("v_bfe_u32 v2, v0, 4, 1"); E("v_lshl_add_u32 v3, v2, 3, v7"); E(f"v_add_u32 v3, {RAW-16}, v3"); E("v_cmp_eq_u32 vcc, 1, v2")
    for j in range(3): E(f"ds_read_b64 {v(44+2*j,2)}, v3 offset:{1024*k+8*j}")
    if first:
        for j in range(4):
            E(f"v_mov_b32 v{10+j}, {U0 + j*CS + 16*(OFF[j]+1)}"); E(f"v_mov_b32 v14, {U0 + (4+j)*CS + 16*(OFF[4+j]+1)}")
            E(f"v_cndmask_b32 v{10+j}, v{10+j}, v14, vcc"); E(f"v_add_u32 v{10+j}, v{10+j}, v7")
    E("s_waitcnt lgkmcnt(0)")
    E(f"ds_write_b128 v10, v[44:47] offset:{1024*k}")
    for i in range(4): E(f"v_alignbit_b32 v{52+i}, v{45+i}, v{44+i}, 16")
    E(f"ds_write_b128 v11, v[52:55] offset:{1024*k}")
    for i in range(4): E(f"v_mov_b32 v{56+i}, v{45+i}")
    E(f"ds_write_b128 v12, v[56:59] offset:{1024*k}")
    for i in range(4): E(f"v_alignbit_b32 v{60+i}, v{46+i}, v{45+i}, 16")
    E(f"ds_write_b128 v13, v[60:63] offset:{1024*k}")
def episetup():
    E("s_lshl_b32 s42, s67, 9"); E("v_lshlrev_b32 v14, 3, v0"); E("v_add_u32 v14, s42, v14"); E(f"v_add_u32 v15, {G0}, v14")
    E("v_bfe_u32 v2, v14, 7, 2"); E("v_lshlrev_b32 v2, 4, v2"); E("v_xor_b32 v14, v2, v14"); E(f"v_add_u32 v14, {Y0}, v14")
    E("v_mov_b32 v28, s72"); E("v_mov_b32 v29, s73"); unpack(28, 30, 31); unpack(29, 28, 29)
    E("v_sub_f32 v30, v30, v28"); E("v_sub_f32 v31, v31, v29")
def epilogue(ph):
    tl = PHASES[ph]; k = tl[0] // 2
    if len(tl) == 1:
        lab[0] += 1; l = f"L_e{lab[0]}"
        E("s_cmp_lt_u32 s67, 2"); E(f"s_cbranch_scc{tl[0] & 1} {l}")
    yb = (ph & 1) * YBUF
    for cb in range(4): E(f"ds_read_b64 {v(64+2*cb,2)}, v14 offset:{yb + cb*YCB}")
    E(f"ds_read_b64 v[72:73], v15 offset:{2048*k}")
    r0, r1 = UR + 3*k + 1, UR + 3*k + 2
    unpack(r0, 74, 76); unpack(r1, 75, 77)
    E("s_waitcnt lgkmcnt(1)")
    for i in range(4): E(f"v_sub_f32 v{64+i}, v{64+i}, v{68+i}")
    for i in range(4): E(f"v_fmac_f32 v{68+i}, v{74+i}, v{28+i//2}")
    for i in range(4): E(f"v_fmac_f32 v{64+i}, v{74+i}, v{30+i//2}")
    E("s_waitcnt lgkmcnt(0)")
    for i in range(4): E(f"v_fma_f32 v{64+i}, v{64+i}, v{72+(i&1)}, v{68+i}")
    o = 80 + 2 * k
    E(f"v_cvt_pk_bf16_f32 v{o}, v64, v66"); E(f"v_cvt_pk_bf16_f32 v{o+1}, v65, v67")
    E(f"buffer_store_dword v{o}, v8, s[8:11], s{76+k} offen"); E(f"buffer_store_dword v{o+1}, v8, s[8:11], s{76+k} offen offset:1024")
    if len(tl) == 1: Lb(l)
    else: vmq.extend(['st', 'st'])
bars = [it for it in seq if it[0] == 'bar'] + [('bar', 8, NPH)]
done = 0; nb = 0
for j, b in enumerate(bars):
    if j > 0 and bars[j-1][2] is not None and bars[j-1][2] >= 1: epilogue(bars[j-1][2] - 1)
    gathers(100 + j)
    while done < b[1]:
        copies(done // 2, done == 0); done += 2
    if j == 1: episetup()
    E("s_waitcnt lgkmcnt(0)")
    stamp(3 + nb); nb += 1
    E("s_barrier")
epilogue(NPH - 1)
stamp(3 + nb)
if STAMP:
    E("s_waitcnt vmcnt(0)"); stamp(4 + nb, 14)
Lb("L_end")
E("s_endpgm")

import os; sys.path.insert(0, os.path.dirname(__file__)); import hz
out, ncnt = hz.fix(out, int(OPT.get('hzv', 0))); print('hazard nops', ncnt)
hdr = open('cdna_kernels/%s.s.ref' % NAME).read().split('\n')
hdr = [l for l in hdr if l.startswith(';') and '@launch' not in l and l.startswith('; ') ]
txt = '\n'.join(hdr[:22]) + f"\n; @launch grid=(256,1,1) block=(512,1,1) lds={LDS}\n"
txt += f""".amdgcn_target "amdgcn-amd-amdhsa--gfx950"
.text
.globl {NAME}_kernel
.p2align 8
.type {NAME}_kernel,@function
{NAME}_kernel:
""" + '\n'.join(out) + f"""
.section .rodata,"a"
.p2align 6
.amdhsa_kernel {NAME}_kernel
  .amdhsa_next_free_vgpr 256
  .amdhsa_next_free_sgpr 102
  .amdhsa_accum_offset 256
  .amdhsa_group_segment_fixed_size 0
  .amdhsa_kernarg_size 160
  .amdhsa_user_sgpr_count 2
  .amdhsa_user_sgpr_kernarg_segment_ptr 1
  .amdhsa_system_sgpr_workgroup_id_x 1
.end_amdhsa_kernel
"""
open(sys.argv[1], 'w').write(txt)
print("LDS", LDS, "lines", len(out))
```

```python
import sys, math, struct
NAME = "gated_mix__ssm_conv_s4d__ssm_conv_s4__prompt"
OPT = dict(a.split('=') for a in sys.argv[2:] if '=' in a)
STAMP = int(OPT.get('stamp', 0))
PHASES = eval(OPT.get('phases', '[[0,1],[2,3],[4,5],[6],[7]]'))
NPH = len(PHASES)
out = []
def E(s): out.append("    " + s)
def Lb(s): out.append(s + ":")
def f2u(x): return struct.unpack('<I', struct.pack('<f', x))[0]
def v(i, n=1): return f"v{i}" if n == 1 else f"v[{i}:{i+n-1}]"
def s(i, n=1): return f"s{i}" if n == 1 else f"s[{i}:{i+n-1}]"
def nop(n):
    if n > 0: E(f"s_nop {n-1}")

LATE = eval(OPT.get('late', '[2,3]'))
GPOS = eval(OPT.get('gpos', '[0,2,9,14,99,101,102,103]'))
GF = eval(OPT.get('gf', '[6,8]'))
PRIO = int(OPT.get('prio', 3))
OFF = [12, 3, 7, 6, 10, 12, 1, 0]
CS = 272 * 16
UCH = 8 * CS
U0 = 0
KR0 = 2 * UCH; KRS = 288 * 16
E0 = KR0 + 4 * KRS; ES = 288; EW = 16 * ES
Y0 = E0; YCB = 2048; YBUF = 4 * YCB
G0 = E0 + 2 * YBUF
PX0 = E0 + 8 * EW
CNT = PX0 + 4 * 3072
LDS = CNT + 16
offc = 0
for i, o in enumerate(OFF): offc |= o << (4 * i)
SREG = {**{k: 80 + 2 * k for k in range(9)}, 15: 98, 14: 100, 9: 28, 10: 30, 11: 32, 12: 36, 13: 38}
used = set()
def stamp(k, real=None):
    if not STAMP: return
    E(f"s_memtime s[{SREG[k]}:{SREG[k]+1}]"); used.add(k)
    if real is not None: E(f"s_memrealtime s[{SREG[real]}:{SREG[real]+1}]"); used.add(real)
    if real == 14:
        E("s_waitcnt lgkmcnt(0)")
        E("s_lshl_b32 s20, s2, 3"); E("s_add_u32 s20, s20, s3"); E("s_lshl_b32 s20, s20, 6"); E("s_add_u32 s20, s20, 0x100000"); E("v_mov_b32 v251, s20")
        for j in sorted(used):
            E(f"v_mov_b32 v250, s{SREG[j]}"); E(f"buffer_store_dword v250, v251, s[12:15], 0 offen offset:{4*j}")
vmq = None
lab = [0]
def role(helper):
    lab[0] += 1; l = f"L_r{lab[0]}"
    if helper: E("s_cmp_lt_u32 s3, 4"); E(f"s_cbranch_scc1 {l}")
    else: E("s_cmp_eq_u32 s75, 0"); E(f"s_cbranch_scc0 {l}")
    return l
def unpack(src, lo, hi):
    E(f"v_lshlrev_b32 v{lo}, 16, v{src}"); E(f"v_and_b32 v{hi}, 0xffff0000, v{src}")
E("s_cmp_ge_u32 s2, 256"); E("s_cbranch_scc1 L_end")
E("s_load_dwordx2 s[4:5], s[0:1], 0")
E("s_load_dwordx4 s[8:11], s[0:1], 136")
E("s_load_dwordx2 s[12:13], s[0:1], 152")
E("v_lshrrev_b32 v1, 6, v0"); E("v_and_b32 v0, 63, v0")
E("v_readfirstlane_b32 s3, v1")
E("s_load_dwordx2 s[42:43], s[0:1], 128")
E("s_load_dwordx2 s[68:69], s[0:1], 48"); E("s_load_dwordx2 s[70:71], s[0:1], 120")
E("s_bfe_u32 s24, s3, 0x10001"); E("s_cmp_eq_u32 s24, 0"); E("s_cbranch_scc0 L_ptrB")
E("s_load_dwordx4 s[28:31], s[0:1], 8"); E("s_load_dwordx4 s[36:39], s[0:1], 24")
E("s_load_dwordx2 s[40:41], s[0:1], 40"); E("s_load_dwordx4 s[32:35], s[0:1], 8")
E("s_branch L_ptrdone")
Lb("L_ptrB")
E("s_load_dwordx4 s[28:31], s[0:1], 64"); E("s_load_dwordx4 s[32:35], s[0:1], 80")
E("s_load_dwordx4 s[36:39], s[0:1], 96"); E("s_load_dwordx2 s[40:41], s[0:1], 112")
Lb("L_ptrdone")
E("s_and_b32 s20, s2, 7"); E("s_lshr_b32 s21, s2, 3")
E("s_lshl_b32 s20, s20, 5"); E("s_add_u32 s20, s20, s21"); E("s_lshl_b32 s22, s20, 2")
E("s_and_b32 s23, s3, 1"); E("s_lshr_b32 s66, s3, 2"); E("s_and_b32 s67, s3, 3")
E("s_lshl_b32 s25, s20, 1"); E("s_add_u32 s25, s25, s23"); E("s_lshl_b32 s25, s25, 8"); E("s_lshl_b32 s26, s66, 7"); E("s_add_u32 s25, s25, s26")
E("v_lshlrev_b32 v2, 1, v0"); E("v_add_u32 v2, s25, v2")
for i in range(10, 16): E(f"v_mov_b32 v{i}, 0")
E("s_lshr_b32 s75, s2, 6"); E("s_lshr_b32 s27, s3, 2"); E("s_or_b32 s75, s75, s27"); E("s_movk_i32 s61, 4096")
E("s_lshl_b32 s26, s2, 2"); E("s_add_u32 s26, s26, s3"); E("s_lshl_b32 s26, s26, 13")
E("v_lshlrev_b32 v3, 4, v0"); E("v_add_u32 v4, s26, v3")
E("s_lshl_b32 s26, s21, 6"); E("s_lshl_b32 s27, s67, 4"); E("s_add_u32 s26, s26, s27")
E("v_and_b32 v1, 15, v0"); E("v_add_u32 v1, s26, v1"); E("v_lshlrev_b32 v1, 10, v1"); E("v_add_u32 v1, s22, v1")
E("s_waitcnt lgkmcnt(0)")
E("s_mov_b32 s16, s10"); E("s_mov_b32 s17, s11")
E("s_mov_b32 s6, 0x200000"); E("s_mov_b32 s7, 0x20000"); E("s_mov_b32 s10, 0x200000"); E("s_mov_b32 s11, 0x20000")
E("s_mov_b32 s14, 0x200000"); E("s_mov_b32 s15, 0x20000"); E("s_mov_b32 s18, 256"); E("s_mov_b32 s19, 0x20000")
E("s_load_dword s44, s[40:41], s22"); E("s_load_dword s72, s[68:69], s22"); E("s_load_dword s73, s[70:71], s22")
for r, p in ((10, 28), (11, 30), (12, 36), (13, 38), (14, 32), (15, 34)):
    E(f"global_load_short_d16_hi v{r}, v2, s[{p}:{p+1}]")
l = role(False)
for r in range(8): E(f"buffer_load_dwordx4 {v(160+4*r,4)}, v4, s[4:7], {'s61' if r > 3 else '0'} offen offset:{1024*(r&3)}")
E("global_load_dwordx4 v[24:27], v3, s[42:43]")
Lb(l)
l = role(True)
E("buffer_load_dword v1, v1, s[4:7], 0 offen")
Lb(l)
stamp(0, 15)
E(f"s_mul_i32 s45, s67, {KRS}"); E(f"s_add_u32 s45, s45, {KR0}")
E(f"s_mul_i32 s46, s3, {EW}"); E(f"s_add_u32 s46, s46, {E0}")
E(f"s_mov_b32 s47, {offc}")
for i in range(4): E(f"v_mov_b32 v{28+i}, 0")
E("v_and_b32 v5, 31, v0"); E("v_lshlrev_b32 v5, 4, v5"); E("v_add_u32 v5, s45, v5"); E("ds_write_b128 v5, v[28:31] offset:4096")
E("v_and_b32 v5, 7, v0"); E("v_lshlrev_b32 v6, 2, v5"); E("v_lshrrev_b32 v6, v6, s47"); E("v_and_b32 v6, 15, v6")
E("v_lshlrev_b32 v6, 4, v6"); E(f"v_mul_u32_u24 v5, {CS}, v5"); E("v_add_u32 v5, v5, v6")
E("v_bfe_u32 v6, v0, 3, 1"); E(f"v_mul_u32_u24 v6, {UCH}, v6"); E("v_add_u32 v5, v5, v6")
E("ds_write_b128 v5, v[28:31]")
E(f"v_mov_b32 v5, {CNT}"); E("ds_write_b32 v5, v28")
VEW, VER = 6, 7
E("v_lshlrev_b32 v6, 2, v0"); E("v_add_u32 v6, s46, v6")
E("v_and_b32 v32, 15, v0"); E("v_lshrrev_b32 v33, 4, v0")
E(f"v_mul_u32_u24 v7, {ES}, v32"); E("v_lshl_add_u32 v7, v33, 4, v7"); E("v_add_u32 v7, s46, v7")
E("v_lshlrev_b32 v8, 11, v0"); E("v_add_u32 v8, s22, v8")
E("v_and_b32 v9, 7, v0"); E("v_lshlrev_b32 v9, 10, v9"); E("v_add_u32 v9, s22, v9"); E("v_subrev_u32 v9, 0x2000, v9")
E("s_lshl_b32 s74, s67, 17")
for k in range(4): E(f"s_add_u32 s{76+k}, s74, {k * 512 * 1024}")
E("s_mov_b64 s[56:57], exec"); E("s_mov_b32 s58, 0"); E("s_mov_b32 s59, 0x80000000"); E("s_mov_b32 s62, -1"); E("s_mov_b32 s63, 0")
E("s_waitcnt lgkmcnt(0)"); E("s_barrier")
E("s_lshl_b32 s49, s44, 16"); E("s_and_b32 s50, s44, 0xffff0000"); E("s_cmp_eq_u32 s23, 0"); E("s_cselect_b32 s49, s49, s50")
E(f"s_mov_b32 s51, {f2u(1.4426950408889634)}"); E("v_mov_b32 v37, s49"); E("v_mul_f32 v37, s51, v37"); E("v_exp_f32 v37, v37")
E("v_cvt_pk_bf16_f32 v37, v37, v37"); E("v_and_b32 v37, 0xffff0000, v37")
E("s_waitcnt vmcnt(0)")
stamp(1)
UR = 16
vmq_h = []
def gather_h(r):
    k, j = r // 2, r & 1
    if j == 0:
        E(f"buffer_load_dword v{UR+3*k+1}, v8, s[4:7], s{76+k} offen"); vmq_h.append(('u', k))
    else:
        E(f"v_add_u32 v4, s{76+k}, v9")
        E(f"buffer_load_dword v{UR+3*k+2}, v8, s[4:7], s{76+k} offen offset:1024")
        E("s_mov_b64 exec, 0xff"); E(f"buffer_load_dword v{UR+3*k}, v4, s[4:7], 0 offen"); E("s_mov_b64 exec, s[56:57]")
        vmq_h.extend([('u', k)] * 2)
def gathers(pos):
    rs = [r for r in range(8) if GPOS[r] == pos]
    if rs and pos < 99: l = role(True)
    for r in rs: gather_h(r)
    if rs and pos < 99: Lb(l)
vmq = vmq_h
gathers(0)
l = role(False)
for j in range(4):
    for r in range(8): E(f"v_dot2_f32_bf16 v{192+r}, v{160+4*r+j}, v{24+j}, {'0' if j == 0 else 'v%d' % (192+r)}")
for r in range(4): E(f"v_permlane32_swap_b32 v{192+r}, v{196+r}")
for r in range(4): E(f"v_add_f32 v{192+r}, v{192+r}, v{196+r}")
for r in range(2): E(f"v_permlane16_swap_b32 v{192+r}, v{194+r}")
for r in range(2): E(f"v_add_f32 v{28+r}, v{192+r}, v{194+r}")
for dpp in ("row_shr:1", "row_shr:2", "row_shr:4", "row_shr:8"):
    for rr in range(2): E(f"v_add_f32_dpp v{28+rr}, v{28+rr}, v{28+rr} {dpp} row_mask:0xf bank_mask:0xf")
E("v_cvt_pk_bf16_f32 v30, v28, v29"); unpack(30, 28, 29)
for rr in range(2): E(f"v_mul_f32 v{28+rr}, s51, v{28+rr}")
for rr in range(2): E(f"v_exp_f32 v{28+rr}, -v{28+rr}")
for rr in range(2): E(f"v_add_f32 v{28+rr}, 1.0, v{28+rr}")
for rr in range(2): E(f"v_rcp_f32 v{28+rr}, v{28+rr}")
E("s_lshl_b32 s54, s2, 7"); E("s_lshl_b32 s55, s3, 5"); E("s_add_u32 s54, s54, s55"); E("v_lshl_add_u32 v31, v33, 3, s54")
E("v_cvt_pk_bf16_f32 v30, v28, v29"); unpack(30, 28, 29)
E("s_mov_b32 exec_lo, 0x80008000"); E("s_mov_b32 exec_hi, 0x80008000")
E("buffer_store_dwordx2 v[28:29], v31, s[12:15], 0 offen sc1")
E("s_mov_b64 exec, s[56:57]")
Lb(l)
E("s_cmp_eq_u32 s24, 0"); E("s_cbranch_scc0 L_parB")
E("v_mul_f32 v10, s51, v10"); E("v_exp_f32 v10, v10"); E("v_add_f32 v14, v37, v37"); E("v_mov_b32 v15, 0")
E("v_cvt_pk_bf16_f32 v10, v10, v10"); E("v_and_b32 v10, 0xffff0000, v10"); E("v_xor_b32 v10, 0x80000000, v10")
E("s_branch L_pardone")
Lb("L_parB")
E("v_mul_f32 v14, v37, v14"); E("v_mul_f32 v15, v37, v15")
Lb("L_pardone")
W1, W2, W4, W8, W16, W24, W32, W128, W256, W512 = [40 + 2 * i for i in range(10)]
Q = [60 + 2 * i for i in range(8)]; R = [76 + 2 * i for i in range(4)]; T = [84 + 2 * i for i in range(4)]
LF, HA, DT, HB = 96, 112, 128, 140
E("v_mul_f32 v10, v37, v10"); E("v_mul_f32 v11, v37, v11")
E("v_mul_f32 v10, s51, v10"); E("v_mul_f32 v11, 0.15915494, v11")
E("v_mul_f32 v34, 0x43000000, v10"); E("v_mul_f32 v35, 0x43000000, v11")
E("v_fract_f32 v11, v11"); E("v_fract_f32 v35, v35")
E("v_exp_f32 v10, v10"); E("v_exp_f32 v34, v34")
E(f"v_cos_f32 v{W1}, v11"); E(f"v_sin_f32 v{W1+1}, v11"); E(f"v_cos_f32 v{W128}, v35"); E(f"v_sin_f32 v{W128+1}, v35")
ct = [0]
def put(src, row, conj=False):
    t = 92 + ct[0]; ct[0] = (ct[0] + 1) % 4
    E(f"v_cvt_pk_bf16_f32 v{t}, v{src}, {'-' if conj else ''}v{src+1}")
    E(f"ds_write_b32 v{VEW}, v{t} offset:{row*ES}"); dsn[0] += 1
dsn = [0]
bi = [0]; gfc = [0]
def batch(items, pre=(), conj=False, mf=None):
    bi[0] += 1
    gathers(bi[0])
    for k, it in enumerate(items): E(f"v_pk_mul_f32 {v(T[k],2)}, {v(it[1],2)}, {v(it[2],2)} op_sel:[0,0] op_sel_hi:[0,1]")
    for (sr, row) in pre[:len(pre)//2]: put(sr, row, conj)
    if mf: mf(0)
    for k, it in enumerate(items): E(f"v_pk_fma_f32 {v(it[0],2)}, {v(it[1],2)}, {v(it[2],2)}, {v(T[k],2)} op_sel:[1,1,0] op_sel_hi:[1,0,1] neg_lo:[0,1,0]")
    for (sr, row) in pre[len(pre)//2:]: put(sr, row, conj)
    if mf: mf(1)
    for it in items:
        if len(it) > 3: put(it[0], it[3], conj)
    if bi[0] == GF[0]:
        l = role(False)
        E("s_waitcnt vmcnt(0)")
        E(f"v_mov_b32 v30, {CNT}"); E("v_mov_b32 v31, 1")
        E("s_mov_b64 exec, 1"); E("ds_add_rtn_u32 v29, v30, v31"); E("s_mov_b64 exec, s[56:57]")
        sv = vmq_h[:]; stamp(12); vmq_h[:] = sv
        Lb(l); gfc[0] = len(out)
    if bi[0] == GF[1]:
        n = sum(1 for x in out[gfc[0]:] if x.strip().startswith('ds_'))
        l = role(False)
        E(f"s_waitcnt lgkmcnt({min(n, 15)})")
        E("v_readfirstlane_b32 s60, v29")
        E("s_cmp_eq_u32 s60, 3"); E(f"s_cbranch_scc0 {l}")
        E("s_lshl_b32 s60, s2, 2"); E("v_mov_b32 v30, s60"); E("s_mov_b64 exec, 1")
        E("buffer_store_dword v31, v30, s[16:19], 0 offen sc1")
        E("s_mov_b64 exec, s[56:57]")
        Lb(l)
def readF(base):
    for ks in range(4): E(f"ds_read_b128 {v(base+4*ks,4)}, v{VER} offset:{64*ks}")
    dsn[0] = 0
def mfm(tile, hf, k0):
    def f(j):
        ks = k0 + j
        if ks == 0: E(f"s_waitcnt lgkmcnt({dsn[0]})")
        c = "0" if ks == 0 else v(DT+4*tile, 4)
        E(f"v_mfma_f32_16x16x32_bf16 {v(DT+4*tile,4)}, {v(hf+4*ks,4)}, {v(LF+4*ks,4)}, {c}")
    return f
E(f"v_pk_mul_f32 {v(T[0],2)}, v[12:13], v[14:15] op_sel:[0,0] op_sel_hi:[0,1]")
E(f"v_pk_mul_f32 {v(W1,2)}, {v(W1,2)}, v[10:11] op_sel_hi:[1,0]"); E(f"v_pk_mul_f32 {v(W128,2)}, {v(W128,2)}, v[34:35] op_sel_hi:[1,0]")
E(f"v_pk_fma_f32 {v(Q[0],2)}, v[12:13], v[14:15], {v(T[0],2)} op_sel:[1,1,0] op_sel_hi:[1,0,1] neg_lo:[0,1,0]")
batch([(W2, W1, W1), (W256, W128, W128), (Q[1], Q[0], W128, 8), (R[0], Q[0], W1, 1)], pre=[(Q[0], 0)])
batch([(W4, W2, W2), (W512, W256, W256), (R[1], Q[1], W1, 9), (Q[2], Q[0], W256)])
batch([(R[2], Q[0], W2, 2), (R[0], R[0], W2, 3), (R[3], Q[1], W2, 10), (R[1], R[1], W2, 11)])
batch([(W8, W4, W4), (Q[3], Q[1], W256), (Q[4], Q[0], W512), (Q[5], Q[1], W512)])
batch([(R[2], R[2], W2, 4), (R[0], R[0], W2, 5), (R[3], R[3], W2, 12), (R[1], R[1], W2, 13)])
batch([(W16, W8, W8), (Q[6], Q[2], W512), (Q[7], Q[3], W512)])
batch([(R[2], R[2], W2, 6), (R[0], R[0], W2, 7), (R[3], R[3], W2, 14), (R[1], R[1], W2, 15)])
readF(HA)
E("v_mov_b32 v36, 0x3f80"); E(f"ds_write_b32 v{VEW}, v36")
batch([(W24, W16, W8, 3), (W32, W16, W16, 4)], pre=[(W8, 1), (W16, 2)], conj=True)
batch([(R[1], W8, W32, 5), (R[2], W16, W32, 6), (R[3], W24, W32, 7), (R[0], W32, W32, 8)], conj=True)
batch([(R[1], R[1], W32, 9), (R[2], R[2], W32, 10), (R[3], R[3], W32, 11), (R[0], R[0], W32, 12)], conj=True)
batch([(R[1], R[1], W32, 13), (R[2], R[2], W32, 14), (R[3], R[3], W32, 15)], conj=True)
readF(LF)
batch([(R[0], Q[2], W2, 1), (R[1], Q[3], W2, 5), (R[2], Q[2], W4, 2), (R[3], Q[3], W4, 6)], pre=[(Q[2], 0), (Q[3], 4)])
batch([(R[2], R[2], W2, 3), (R[3], R[3], W2, 7), (R[0], Q[4], W4, 9), (R[1], Q[5], W4, 11)], pre=[(Q[4], 8), (Q[5], 10)], mf=mfm(0, HA, 0))
batch([(R[0], Q[6], W4, 13), (R[1], Q[7], W4, 15), (Q[4], Q[4], W512), (Q[5], Q[5], W512)], pre=[(Q[6], 12), (Q[7], 14)], mf=mfm(0, HA, 2))
readF(HB)
batch([(Q[6], Q[6], W512, 2), (Q[7], Q[7], W512, 3), (R[0], Q[4], W512, 4), (R[1], Q[5], W512, 5)], pre=[(Q[4], 0), (Q[5], 1)])
batch([(Q[6], Q[6], W512, 6), (Q[7], Q[7], W512, 7), (R[0], R[0], W512, 8)], mf=mfm(1, HB, 0))
readF(HA)
f = mfm(1, HB, 2); f(0); f(1)
E(f"s_mul_i32 s48, s67, 3072"); E(f"s_add_u32 s48, s48, {PX0}"); E("v_lshlrev_b32 v34, 4, v0"); E("v_add_u32 v34, s48, v34")
f = mfm(2, HA, 0); f(0); f(1); f = mfm(2, HA, 2); f(0); f(1)
E("s_cmp_lt_u32 s3, 4"); E("s_cbranch_scc0 L_helper")
vmq = None
VKB, VUA, VYW = 8, 9, 5
E("v_lshlrev_b32 v8, 1, v32"); E("v_sub_u32 v8, v33, v8"); E("v_add_u32 v8, 30, v8"); E("v_lshlrev_b32 v8, 4, v8"); E("v_add_u32 v8, s45, v8")
E("v_add_u32 v38, 1, v32"); E("v_and_b32 v35, 7, v38"); E("v_lshrrev_b32 v38, 3, v38"); E("v_add_u32 v38, v38, v33")
E("v_lshlrev_b32 v36, 2, v35"); E("v_lshrrev_b32 v36, v36, s47"); E("v_and_b32 v36, 15, v36")
E("v_add_u32 v38, v38, v36"); E("v_lshlrev_b32 v38, 4, v38"); E(f"v_mul_u32_u24 v9, {CS}, v35"); E("v_add_u32 v9, v9, v38")
E(f"s_mul_i32 s48, s23, {UCH}"); E("v_add_u32 v9, s48, v9")
E("v_lshrrev_b32 v40, 1, v33"); E("v_lshl_add_u32 v40, v40, 4, v32"); E("v_sub_u32 v40, 255, v40"); E("v_lshlrev_b32 v40, 4, v40")
E("v_and_b32 v41, 1, v33"); E("v_xor_b32 v41, 1, v41"); E("v_lshl_add_u32 v40, v41, 3, v40"); E("v_add_u32 v40, s45, v40")
E("v_lshl_add_u32 v44, v33, 4, v32"); E("v_add_u32 v44, 32, v44"); E("v_lshl_add_u32 v45, v33, 5, v32")
E("v_cndmask_b32 v44, v45, v44, s[62:63]")
E("v_lshlrev_b32 v45, 2, v44"); E("v_add_u32 v45, s46, v45")
E("v_sub_u32 v46, 255, v44"); E("v_lshlrev_b32 v46, 4, v46"); E("v_add_u32 v46, s45, v46")
E("v_lshl_add_u32 v47, v33, 6, v32"); E("v_lshlrev_b32 v47, 2, v47"); E("v_add_u32 v47, s46, v47")
E("v_lshlrev_b32 v48, 2, v0"); E("v_add_u32 v48, s46, v48")
E("v_sub_u32 v49, 63, v0"); E("v_lshlrev_b32 v49, 4, v49"); E("v_add_u32 v49, s45, v49")
E("v_and_b32 v50, 1, v0"); E("v_cmp_eq_u32 vcc, 1, v50"); E("v_mov_b32 v51, 0x07060100"); E("v_mov_b32 v50, 0x03020100")
E("v_cndmask_b32 v50, v51, v50, vcc")
E("v_mov_b32 v80, 0x03020100"); E("v_cndmask_b32 v51, v80, v51, s[62:63]")
E("v_bfe_u32 v5, v32, 1, 2"); E("v_xor_b32 v5, v5, v33"); E("v_lshlrev_b32 v5, 4, v5"); E("v_lshl_add_u32 v5, v32, 6, v5")
E(f"s_mul_i32 s61, s3, {YCB}"); E(f"s_add_u32 s61, s61, {Y0}"); E("v_add_u32 v5, s61, v5")
stamp(2)
E("s_barrier")
PXR = 144
for t_ in (1, 2, 0): E(f"ds_read_b128 {v(PXR+4*t_,4)}, v34 offset:{1024*t_}")
def padd(t_):
    for h in range(4): E(f"v_add_f32 v{DT+4*t_+h}, v{DT+4*t_+h}, v{PXR+4*t_+h}")
E("s_waitcnt lgkmcnt(1)"); padd(1); padd(2)
X = DT + 4
E(f"v_cvt_pk_bf16_f32 v55, v{X}, v{X}"); E(f"v_cvt_pk_bf16_f32 v59, v{X+2}, v{X+2}")
for i in range(4): E(f"v_cvt_pk_bf16_f32 v{62+i}, v{DT+8+i}, v{DT+8+i}")
E("ds_write_b32 v45, v55")
E("s_mov_b64 exec, s[58:59]"); E("s_mov_b32 exec_hi, -1")
E("ds_write_b32 v45, v59 offset:64")
E("s_mov_b64 exec, s[56:57]")
for i in range(4): E(f"ds_write_b32 v47, v{62+i} offset:{512+64*i}")
E("ds_read_b32 v52, v45 offset:4"); E("ds_read_b32 v56, v45 offset:68")
E("ds_read2_b32 v[66:67], v48 offset0:128 offset1:129"); E("ds_read2_b32 v[74:75], v48 offset0:192 offset1:193")
E("s_waitcnt lgkmcnt(10)"); padd(0)
E(f"v_cvt_pk_bf16_f32 v42, v{DT+3}, v{DT+2}"); E(f"v_cvt_pk_bf16_f32 v43, v{DT+1}, v{DT}")
E("ds_write_b64 v40, v[42:43]")
E(f"v_cndmask_b32 v60, v{X+1}, v{X+2}, s[62:63]"); E(f"v_cndmask_b32 v61, v{X}, v{X+1}, s[62:63]")
E("v_cvt_pk_bf16_f32 v53, v60, v60"); E("v_cvt_pk_bf16_f32 v54, v60, v61")
E(f"v_cvt_pk_bf16_f32 v57, v{X+3}, v{X+3}"); E(f"v_cvt_pk_bf16_f32 v58, v{X+3}, v{X+2}")
E("s_waitcnt lgkmcnt(3)")
E("v_perm_b32 v52, v57, v52, v51")
E("ds_write_b128 v46, v[52:55]")
E("s_mov_b64 exec, s[58:59]"); E("s_mov_b32 exec_hi, -1")
E("v_subrev_u32 v46, 256, v46")
E("ds_write_b128 v46, v[56:59]")
E("s_mov_b64 exec, s[56:57]")
E("s_waitcnt lgkmcnt(3)")
for (b, o) in ((64, 1024), (72, 0)):
    E(f"v_mov_b32 v{b}, v{b+3}"); E(f"v_perm_b32 v{b+1}, v{b+2}, v{b+3}, v50"); E(f"v_mov_b32 v{b+3}, v{b+2}")
    E(f"ds_write_b128 v49, {v(b,4)} offset:{o}")
stamp(3)
ACC = 24; POOL = 40; NSLOT = int(OPT.get('nslot', 52)); MAXFL = int(OPT.get('maxfl', 10)); AHEAD = int(OPT.get('ahead', 12))
LEAD = int(OPT.get('lead', 8)); YD = int(OPT.get('yd', 3)); YB = int(OPT.get('yb', 8))
seq = []
avail = 0
for ph, tl in enumerate(PHASES):
    k = max(tl) // 2
    newu = 2 * k + 2 > avail
    late = newu and k in LATE and k > 0
    old = avail
    if newu and not late: avail = 2 * k + 2
    if avail != old: seq.append(('bar', avail, ph))
    def part(lo, hi):
        for c in range(8):
            for a in range(lo, hi):
                for P in tl:
                    if a <= P: seq.append(('m', ('A', a, c), ('B', P - a, c), P, ACC + 8 * (ph & 1) + 4 * (P & 1)))
    if late:
        part(0, old); avail = 2 * k + 2; seq.insert(len(seq) - LEAD, ('bar', avail, None)); part(old, 8)
    else: part(0, 8)
    seq.append(('y', ph))
for ph in range(NPH - 1):
    i = seq.index(('y', ph)); seq.pop(i); seq.insert(i + YD, ('y', ph))
    if ph in eval(OPT.get('ybar', '[]')): seq.insert(i + YD + YB, ('bar', 2 * ph + 2, None))
uses = {}
for i, it in enumerate(seq):
    if it[0] == 'm':
        for f in it[1:3]: uses.setdefault(f, []).append(i)
def nxt(f, i):
    for u in uses[f]:
        if u >= i: return u
    return 10**9
q = []; slot = {}; free = list(range(NSLOT)); nload = 0
def need(f):
    global q
    if f in q:
        n = len(q) - 1 - q.index(f); assert n <= 15
        E(f"s_waitcnt lgkmcnt({n})"); q = q[len(q) - n:]
def load(f, i, pf):
    global nload
    if not free:
        vic = max(slot, key=lambda g: nxt(g, i))
        if nxt(vic, i) <= pf: return False
        free.append(slot.pop(vic))
    sl = free.pop(0); slot[f] = sl; nload += 1; q.append(f)
    if f[0] == 'A': E(f"ds_read_b128 {v(POOL+4*sl,4)}, v{VUA} offset:{512*f[1]+64*f[2]}")
    else: E(f"ds_read_b128 {v(POOL+4*sl,4)}, v{VKB} offset:{512*(7-f[1])+64*f[2]}")
    return True
cur = 0; pf = 0; started = set()
def prefetch(i, maxn):
    global pf
    n = 0
    while pf < len(seq) and pf <= i + AHEAD:
        it = seq[pf]
        if it[0] == 'm':
            for f in it[1:3]:
                if f not in slot:
                    if (f[0] == 'A' and f[1] >= cur) or len(q) >= MAXFL or n >= maxn: return
                    if not load(f, i, pf): return
                    n += 1
        pf += 1
for it in seq[1:1 + AHEAD]:
    if it[0] == 'm' and it[2] not in slot and len(q) < 8: load(it[2], 0, 0)
nb = 0
def ywait():
    global q
    if None in q:
        n = q[::-1].index(None); E(f"s_waitcnt lgkmcnt({n})"); q = q[len(q) - n:]
for i, it in enumerate(seq):
    if it[0] == 'bar':
        ywait()
        E("s_barrier"); cur = it[1]; stamp(4 + nb); nb += 1
        prefetch(i, 99)
    elif it[0] == 'y':
        ph = it[1]
        for P in PHASES[ph]:
            E(f"ds_write_b128 v{VYW}, {v(ACC + 8*(ph&1) + 4*(P&1), 4)} offset:{ph*YBUF + 1024*(P&1)}"); q.append(None)
    else:
        pf = max(pf, i)
        for f in it[1:3]:
            if f not in slot: assert load(f, i, i - 1)
        need(it[1]); need(it[2])
        P = it[3]; c = v(it[4], 4) if P in started else "0"; started.add(P)
        E(f"v_mfma_f32_16x16x32_bf16 {v(it[4],4)}, {v(POOL+4*slot[it[1]],4)}, {v(POOL+4*slot[it[2]],4)}, {c}")
        for f in it[1:3]:
            if nxt(f, i + 1) >= 10**9 and f in slot: free.append(slot.pop(f))
        prefetch(i + 1, 2)
print("conv loads", nload)
ywait()
E("s_barrier")
stamp(4 + nb, 14)
E("s_endpgm")
Lb("L_helper")
used.clear(); used.update([0, 1, 15])
vmq = vmq_h
def vmwait(tag):
    if tag not in vmq: return
    idx = max(i for i, t in enumerate(vmq) if t == tag)
    n = len(vmq) - 1 - idx
    E(f"s_waitcnt vmcnt({n})"); del vmq[:idx + 1]
E(f"s_setprio {PRIO}")
RAW = U0 + 16 * (OFF[0] + 2)
E("s_lshl_b32 s35, s67, 8")
E("v_lshlrev_b32 v5, 2, v0"); E("v_add_u32 v5, s35, v5"); E(f"v_add_u32 v5, {RAW}, v5")
for t_ in range(2): E(f"ds_write_b128 v34, {v(DT+4*t_,4)} offset:{1024*t_}")
E("v_and_b32 v6, 7, v0"); E("v_lshlrev_b32 v6, 1, v6"); E("v_add_u32 v6, s35, v6"); E(f"v_add_u32 v6, {RAW-16}, v6")
E(f"ds_write_b128 v34, {v(DT+8,4)} offset:2048")
E("v_and_b32 v7, 15, v0"); E("v_lshlrev_b32 v7, 4, v7"); E("v_add_u32 v7, s35, v7")
E("v_lshrrev_b32 v2, 5, v0"); E(f"v_mul_u32_u24 v2, {UCH}, v2"); E("v_add_u32 v7, v7, v2")
E("s_mov_b32 s40, 0x05040100"); E("s_mov_b32 s41, 0x07060302")
E("s_waitcnt lgkmcnt(0)")
stamp(2)
E("s_barrier")
def raw(k):
    vmwait(('u', k))
    x, r0, r1 = UR + 3*k, UR + 3*k + 1, UR + 3*k + 2
    E(f"v_perm_b32 v40, v{r1}, v{r0}, s40"); E(f"v_perm_b32 v41, v{r1}, v{r0}, s41")
    E(f"ds_write_b32 v5, v40 offset:{1024*k}"); E(f"ds_write_b32 v5, v41 offset:{1024*k+UCH}")
    E("s_mov_b64 exec, 0xff")
    E(f"ds_write_b16 v6, v{x} offset:{1024*k}"); E(f"ds_write_b16_d16_hi v6, v{x} offset:{1024*k+UCH}")
    E("s_mov_b64 exec, s[56:57]")
def copies(k, first=False):
    raw(k)
    if first:
        E("v_bfe_u32 v2, v0, 4, 1"); E("v_lshl_add_u32 v3, v2, 3, v7"); E(f"v_add_u32 v3, {RAW-16}, v3"); E("v_cmp_eq_u32 vcc, 1, v2")
    for j in range(3): E(f"ds_read_b64 {v(44+2*j,2)}, v3 offset:{1024*k+8*j}")
    if first:
        for j in range(4):
            E(f"v_mov_b32 v{10+j}, {U0 + j*CS + 16*(OFF[j]+1)}"); E(f"v_mov_b32 v14, {U0 + (4+j)*CS + 16*(OFF[4+j]+1)}")
            E(f"v_cndmask_b32 v{10+j}, v{10+j}, v14, vcc"); E(f"v_add_u32 v{10+j}, v{10+j}, v7")
    E("s_waitcnt lgkmcnt(0)")
    E(f"ds_write_b128 v10, v[44:47] offset:{1024*k}")
    for i in range(4): E(f"v_alignbit_b32 v{52+i}, v{45+i}, v{44+i}, 16")
    E(f"ds_write_b128 v11, v[52:55] offset:{1024*k}")
    for i in range(4): E(f"v_mov_b32 v{56+i}, v{45+i}")
    E(f"ds_write_b128 v12, v[56:59] offset:{1024*k}")
    for i in range(4): E(f"v_alignbit_b32 v{60+i}, v{46+i}, v{45+i}, 16")
    E(f"ds_write_b128 v13, v[60:63] offset:{1024*k}")
def episetup():
    E("s_lshl_b32 s42, s67, 9"); E("v_lshlrev_b32 v14, 3, v0"); E("v_add_u32 v14, s42, v14")
    E("v_bfe_u32 v2, v14, 7, 2"); E("v_lshlrev_b32 v2, 4, v2"); E("v_xor_b32 v14, v2, v14"); E(f"v_add_u32 v14, {Y0}, v14")
    E("v_mov_b32 v28, s72"); E("v_mov_b32 v29, s73"); unpack(28, 30, 31); unpack(29, 28, 29)
    E("v_sub_f32 v30, v30, v28"); E("v_sub_f32 v31, v31, v29")
def epilogue(ph):
    tl = PHASES[ph]; k = tl[0] // 2
    if len(tl) == 1:
        lab[0] += 1; l = f"L_e{lab[0]}"
        E("s_cmp_lt_u32 s67, 2"); E(f"s_cbranch_scc{tl[0] & 1} {l}")
    yb = ph * YBUF
    for cb in range(4): E(f"ds_read_b64 {v(64+2*cb,2)}, v14 offset:{yb + cb*YCB}")
    r0, r1 = UR + 3*k + 1, UR + 3*k + 2
    unpack(r0, 74, 76); unpack(r1, 75, 77)
    E("s_waitcnt lgkmcnt(0)")
    for i in range(4): E(f"v_sub_f32 v{64+i}, v{64+i}, v{68+i}")
    for i in range(4): E(f"v_fmac_f32 v{68+i}, v{74+i}, v{28+i//2}")
    for i in range(4): E(f"v_fmac_f32 v{64+i}, v{74+i}, v{30+i//2}")
    if 'g' in vmq: vmwait('g')
    for i in range(4): E(f"v_fma_f32 v{64+i}, v{64+i}, v{90+2*k+(i&1)}, v{68+i}")
    o = 80 + 2 * k
    E(f"v_cvt_pk_bf16_f32 v{o}, v64, v66"); E(f"v_cvt_pk_bf16_f32 v{o+1}, v65, v67")
    E(f"buffer_store_dword v{o}, v8, s[8:11], s{76+k} offen"); E(f"buffer_store_dword v{o+1}, v8, s[8:11], s{76+k} offen offset:1024")
    if len(tl) == 1: Lb(l)
    else: vmq.extend(['st', 'st'])
SCH = OPT.get('sch', 'r4,c0/p,r5,c1,s/r6,k,r7,c2/c3,e0,e1/e2/e3').split('/')
def act(t):
    if t[0] == 'r': gather_h(int(t[1]))
    elif t[0] == 'c': copies(int(t[1]), t[1] == '0')
    elif t[0] == 'e': epilogue(int(t[1]))
    elif t == 's': episetup()
    elif t == 'p':
        E("v_lshlrev_b32 v99, 2, v0"); E("buffer_load_dword v98, v99, s[16:19], 0 offen sc1"); vmq.append('p')
        E("s_mov_b32 s64, 0"); E("s_mov_b32 s65, 1"); E("s_movk_i32 s43, 4096")
        E("s_lshl_b32 s42, s67, 9"); E("v_lshlrev_b32 v15, 3, v0"); E("v_add_u32 v15, s42, v15")
    elif t == 'k':
        vmwait('p')
        Lb("L_poll")
        E("v_cmp_ne_u32 vcc, s65, v98"); E("s_cbranch_vccz L_pollok")
        E("s_add_u32 s64, s64, 1"); E("s_cmp_gt_u32 s64, 2000000"); E("s_cbranch_scc1 L_pollok")
        E("s_sleep 1"); E("buffer_load_dword v98, v99, s[16:19], 0 offen sc1"); E("s_waitcnt vmcnt(0)"); E("s_branch L_poll")
        Lb("L_pollok")
        for k in range(4):
            E(f"buffer_load_dwordx2 {v(90+2*k,2)}, v15, s[12:15], {'s43' if k > 1 else '0'} offen offset:{2048*(k&1)} sc1"); vmq.append('g')
nb = 0
assert len(SCH) == sum(1 for it in seq if it[0] == 'bar') + 2
for j, ts in enumerate(SCH):
    for t in ts.split(','):
        if t: act(t)
    stamp(3 + nb); nb += 1
    if j < len(SCH) - 1: E("s_waitcnt lgkmcnt(0)"); E("s_barrier")
if STAMP:
    E("s_waitcnt vmcnt(0)"); stamp(3 + nb, 14)
Lb("L_end")
E("s_endpgm")
import os; sys.path.insert(0, os.path.dirname(__file__)); import hz
out, ncnt = hz.fix(out, int(OPT.get('hzv', 0))); print('hazard nops', ncnt)
hdr = open('cdna_kernels/%s.s.ref' % NAME).read().split('\n')
hdr = [l for l in hdr if l.startswith(';') and '@launch' not in l and l.startswith('; ') ]
txt = '\n'.join(hdr[:22]) + f"\n; @launch grid=(256,1,1) block=(512,1,1) lds={LDS}\n"
txt += f""".amdgcn_target "amdgcn-amd-amdhsa--gfx950"
.text
.globl {NAME}_kernel
.p2align 8
.type {NAME}_kernel,@function
{NAME}_kernel:
""" + '\n'.join(out) + f"""
.section .rodata,"a"
.p2align 6
.amdhsa_kernel {NAME}_kernel
  .amdhsa_next_free_vgpr 256
  .amdhsa_next_free_sgpr 102
  .amdhsa_accum_offset 256
  .amdhsa_group_segment_fixed_size 0
  .amdhsa_kernarg_size 160
  .amdhsa_user_sgpr_count 2
  .amdhsa_user_sgpr_kernarg_segment_ptr 1
  .amdhsa_system_sgpr_workgroup_id_x 1
.end_amdhsa_kernel
"""
open(sys.argv[1], 'w').write(txt)
print("LDS", LDS, "lines", len(out))
```

```python
import sys, math, struct
NAME = "gated_mix__ssm_conv_s4d__ssm_conv_s4__prompt"
OPT = dict(a.split('=') for a in sys.argv[2:] if '=' in a)
STAMP = int(OPT.get('stamp', 0))
PHASES = eval(OPT.get('phases', '[[0,1],[2,3],[4,5],[6],[7]]'))
NPH = len(PHASES)
out = []
def E(s): out.append("    " + s)
def Lb(s): out.append(s + ":")
def f2u(x): return struct.unpack('<I', struct.pack('<f', x))[0]
def v(i, n=1): return f"v{i}" if n == 1 else f"v[{i}:{i+n-1}]"
def s(i, n=1): return f"s{i}" if n == 1 else f"s[{i}:{i+n-1}]"
def nop(n):
    if n > 0: E(f"s_nop {n-1}")

LATE = eval(OPT.get('late', '[2,3]'))
GPOS = eval(OPT.get('gpos', '[0,2,9,14,99,101,102,103]'))
GF = eval(OPT.get('gf', '[6,8]'))
PRIO = int(OPT.get('prio', 3))
OFF = [12, 3, 7, 6, 10, 12, 1, 0]
CS = 272 * 16
UCH = 8 * CS
U0 = 0
KR0 = 2 * UCH; KRS = 288 * 16
E0 = KR0 + 4 * KRS; ES = 288; EW = 16 * ES
Y0 = E0; YCB = 2048; YBUF = 4 * YCB
G0 = E0 + 2 * YBUF
PX0 = E0 + 8 * EW
CNT = PX0 + 4 * 3072
LDS = CNT + 16
offc = 0
for i, o in enumerate(OFF): offc |= o << (4 * i)
SREG = {**{k: 80 + 2 * k for k in range(9)}, 15: 98, 14: 100, 9: 28, 10: 30, 11: 32, 12: 36, 13: 38}
used = set()
def stamp(k, real=None):
    if not STAMP: return
    E(f"s_memtime s[{SREG[k]}:{SREG[k]+1}]"); used.add(k)
    if real is not None: E(f"s_memrealtime s[{SREG[real]}:{SREG[real]+1}]"); used.add(real)
    if real == 14:
        E("s_waitcnt lgkmcnt(0)")
        E("s_lshl_b32 s20, s2, 3"); E("s_add_u32 s20, s20, s3"); E("s_lshl_b32 s20, s20, 6"); E("s_add_u32 s20, s20, 0x100000"); E("v_mov_b32 v251, s20")
        for j in sorted(used):
            E(f"v_mov_b32 v250, s{SREG[j]}"); E(f"buffer_store_dword v250, v251, s[12:15], 0 offen offset:{4*j}")
vmq = None
lab = [0]
def role(helper):
    lab[0] += 1; l = f"L_r{lab[0]}"
    if helper: E("s_cmp_lt_u32 s3, 4"); E(f"s_cbranch_scc1 {l}")
    else: E("s_cmp_eq_u32 s75, 0"); E(f"s_cbranch_scc0 {l}")
    return l
def unpack(src, lo, hi):
    E(f"v_lshlrev_b32 v{lo}, 16, v{src}"); E(f"v_and_b32 v{hi}, 0xffff0000, v{src}")
E("s_cmp_ge_u32 s2, 256"); E("s_cbranch_scc1 L_end")
E("s_load_dwordx2 s[4:5], s[0:1], 0")
E("s_load_dwordx4 s[8:11], s[0:1], 136")
E("s_load_dwordx2 s[12:13], s[0:1], 152")
CPF = int(OPT.get('cpf', 0))
if CPF:
    E(f"s_cmp_ge_u32 s2, {CPF}"); E("s_cbranch_scc1 L_nopf")
    E("s_getpc_b64 s[90:91]"); E("v_lshlrev_b32 v252, 6, v0"); E("v_mov_b32 v253, s91")
    E("v_add_co_u32 v252, vcc, s90, v252"); E("v_addc_co_u32 v253, vcc, 0, v253, vcc")
    E("v_cmp_gt_u32 vcc, NCODE, v0"); E("s_and_saveexec_b64 s[92:93], vcc"); E("s_cbranch_execz L_pfskip")
    E("global_load_dword v254, v[252:253], off")
    Lb("L_pfskip"); E("s_mov_b64 exec, s[92:93]")
    Lb("L_nopf")
E("v_lshrrev_b32 v1, 6, v0"); E("v_and_b32 v0, 63, v0")
E("v_readfirstlane_b32 s3, v1")
E("s_load_dwordx2 s[42:43], s[0:1], 128")
E("s_load_dwordx2 s[68:69], s[0:1], 48"); E("s_load_dwordx2 s[70:71], s[0:1], 120")
E("s_bfe_u32 s24, s3, 0x10001"); E("s_cmp_eq_u32 s24, 0"); E("s_cbranch_scc0 L_ptrB")
E("s_load_dwordx4 s[28:31], s[0:1], 8"); E("s_load_dwordx4 s[36:39], s[0:1], 24")
E("s_load_dwordx2 s[40:41], s[0:1], 40"); E("s_load_dwordx4 s[32:35], s[0:1], 8")
E("s_branch L_ptrdone")
Lb("L_ptrB")
E("s_load_dwordx4 s[28:31], s[0:1], 64"); E("s_load_dwordx4 s[32:35], s[0:1], 80")
E("s_load_dwordx4 s[36:39], s[0:1], 96"); E("s_load_dwordx2 s[40:41], s[0:1], 112")
Lb("L_ptrdone")
E("s_and_b32 s20, s2, 7"); E("s_lshr_b32 s21, s2, 3")
E("s_lshl_b32 s20, s20, 5"); E("s_add_u32 s20, s20, s21"); E("s_lshl_b32 s22, s20, 2")
E("s_and_b32 s23, s3, 1"); E("s_lshr_b32 s66, s3, 2"); E("s_and_b32 s67, s3, 3")
E("s_lshl_b32 s25, s20, 1"); E("s_add_u32 s25, s25, s23"); E("s_lshl_b32 s25, s25, 8"); E("s_lshl_b32 s26, s66, 7"); E("s_add_u32 s25, s25, s26")
E("v_lshlrev_b32 v2, 1, v0"); E("v_add_u32 v2, s25, v2")
for i in range(10, 16): E(f"v_mov_b32 v{i}, 0")
E("s_lshr_b32 s75, s2, 6"); E("s_lshr_b32 s27, s3, 2"); E("s_or_b32 s75, s75, s27"); E("s_movk_i32 s61, 4096")
E("s_lshl_b32 s26, s2, 2"); E("s_add_u32 s26, s26, s3"); E("s_lshl_b32 s26, s26, 13")
E("v_lshlrev_b32 v3, 4, v0"); E("v_add_u32 v4, s26, v3")
E("s_lshl_b32 s26, s21, 6"); E("s_lshl_b32 s27, s67, 4"); E("s_add_u32 s26, s26, s27")
E("v_and_b32 v1, 15, v0"); E("v_add_u32 v1, s26, v1"); E("v_lshlrev_b32 v1, 10, v1"); E("v_add_u32 v1, s22, v1")
E("s_waitcnt lgkmcnt(0)")
E("s_mov_b32 s16, s10"); E("s_mov_b32 s17, s11")
E("s_mov_b32 s6, 0x200000"); E("s_mov_b32 s7, 0x20000"); E("s_mov_b32 s10, 0x200000"); E("s_mov_b32 s11, 0x20000")
E("s_mov_b32 s14, 0x200000"); E("s_mov_b32 s15, 0x20000"); E("s_mov_b32 s18, 256"); E("s_mov_b32 s19, 0x20000")
E("s_load_dword s44, s[40:41], s22"); E("s_load_dword s72, s[68:69], s22"); E("s_load_dword s73, s[70:71], s22")
for r, p in ((10, 28), (11, 30), (12, 36), (13, 38), (14, 32), (15, 34)):
    E(f"global_load_short_d16_hi v{r}, v2, s[{p}:{p+1}]")
l = role(False)
for r in range(8): E(f"buffer_load_dwordx4 {v(160+4*r,4)}, v4, s[4:7], {'s61' if r > 3 else '0'} offen offset:{1024*(r&3)}")
E("global_load_dwordx4 v[24:27], v3, s[42:43]")
Lb(l)
l = role(True)
E("buffer_load_dword v1, v1, s[4:7], 0 offen")
Lb(l)
stamp(0, 15)
E(f"s_mul_i32 s45, s67, {KRS}"); E(f"s_add_u32 s45, s45, {KR0}")
E(f"s_mul_i32 s46, s3, {EW}"); E(f"s_add_u32 s46, s46, {E0}")
E(f"s_mov_b32 s47, {offc}")
for i in range(4): E(f"v_mov_b32 v{28+i}, 0")
E("v_and_b32 v5, 31, v0"); E("v_lshlrev_b32 v5, 4, v5"); E("v_add_u32 v5, s45, v5"); E("ds_write_b128 v5, v[28:31] offset:4096")
E("v_and_b32 v5, 7, v0"); E("v_lshlrev_b32 v6, 2, v5"); E("v_lshrrev_b32 v6, v6, s47"); E("v_and_b32 v6, 15, v6")
E("v_lshlrev_b32 v6, 4, v6"); E(f"v_mul_u32_u24 v5, {CS}, v5"); E("v_add_u32 v5, v5, v6")
E("v_bfe_u32 v6, v0, 3, 1"); E(f"v_mul_u32_u24 v6, {UCH}, v6"); E("v_add_u32 v5, v5, v6")
E("ds_write_b128 v5, v[28:31]")
E(f"v_mov_b32 v5, {CNT}"); E("ds_write_b32 v5, v28")
VEW, VER = 6, 7
E("v_lshlrev_b32 v6, 2, v0"); E("v_add_u32 v6, s46, v6")
E("v_and_b32 v32, 15, v0"); E("v_lshrrev_b32 v33, 4, v0")
E(f"v_mul_u32_u24 v7, {ES}, v32"); E("v_lshl_add_u32 v7, v33, 4, v7"); E("v_add_u32 v7, s46, v7")
E("v_lshlrev_b32 v8, 11, v0"); E("v_add_u32 v8, s22, v8")
E("v_and_b32 v9, 7, v0"); E("v_lshlrev_b32 v9, 10, v9"); E("v_add_u32 v9, s22, v9"); E("v_subrev_u32 v9, 0x2000, v9")
E("s_lshl_b32 s74, s67, 17")
for k in range(4): E(f"s_add_u32 s{76+k}, s74, {k * 512 * 1024}")
E("s_mov_b64 s[56:57], exec"); E("s_mov_b32 s58, 0"); E("s_mov_b32 s59, 0x80000000"); E("s_mov_b32 s62, -1"); E("s_mov_b32 s63, 0")
E("s_waitcnt lgkmcnt(0)"); E("s_barrier")
E("s_lshl_b32 s49, s44, 16"); E("s_and_b32 s50, s44, 0xffff0000"); E("s_cmp_eq_u32 s23, 0"); E("s_cselect_b32 s49, s49, s50")
E(f"s_mov_b32 s51, {f2u(1.4426950408889634)}"); E("v_mov_b32 v37, s49"); E("v_mul_f32 v37, s51, v37"); E("v_exp_f32 v37, v37")
E("v_cvt_pk_bf16_f32 v37, v37, v37"); E("v_and_b32 v37, 0xffff0000, v37")
E("s_waitcnt vmcnt(0)")
stamp(1)
UR = 16
vmq_h = []
def gather_h(r):
    k, j = r // 2, r & 1
    if j == 0:
        E(f"buffer_load_dword v{UR+3*k+1}, v8, s[4:7], s{76+k} offen"); vmq_h.append(('u', k))
    else:
        E(f"v_add_u32 v4, s{76+k}, v9")
        E(f"buffer_load_dword v{UR+3*k+2}, v8, s[4:7], s{76+k} offen offset:1024")
        E("s_mov_b64 exec, 0xff"); E(f"buffer_load_dword v{UR+3*k}, v4, s[4:7], 0 offen"); E("s_mov_b64 exec, s[56:57]")
        vmq_h.extend([('u', k)] * 2)
def gathers(pos):
    rs = [r for r in range(8) if GPOS[r] == pos]
    if rs and pos < 99: l = role(True)
    for r in rs: gather_h(r)
    if rs and pos < 99: Lb(l)
vmq = vmq_h
gathers(0)
l = role(False)
for j in range(4):
    for r in range(8): E(f"v_dot2_f32_bf16 v{192+r}, v{160+4*r+j}, v{24+j}, {'0' if j == 0 else 'v%d' % (192+r)}")
for r in range(4): E(f"v_permlane32_swap_b32 v{192+r}, v{196+r}")
for r in range(4): E(f"v_add_f32 v{192+r}, v{192+r}, v{196+r}")
for r in range(2): E(f"v_permlane16_swap_b32 v{192+r}, v{194+r}")
for r in range(2): E(f"v_add_f32 v{28+r}, v{192+r}, v{194+r}")
for dpp in ("row_shr:1", "row_shr:2", "row_shr:4", "row_shr:8"):
    for rr in range(2): E(f"v_add_f32_dpp v{28+rr}, v{28+rr}, v{28+rr} {dpp} row_mask:0xf bank_mask:0xf")
E("v_cvt_pk_bf16_f32 v30, v28, v29"); unpack(30, 28, 29)
for rr in range(2): E(f"v_mul_f32 v{28+rr}, s51, v{28+rr}")
for rr in range(2): E(f"v_exp_f32 v{28+rr}, -v{28+rr}")
for rr in range(2): E(f"v_add_f32 v{28+rr}, 1.0, v{28+rr}")
for rr in range(2): E(f"v_rcp_f32 v{28+rr}, v{28+rr}")
E("s_lshl_b32 s54, s2, 7"); E("s_lshl_b32 s55, s3, 5"); E("s_add_u32 s54, s54, s55"); E("v_lshl_add_u32 v31, v33, 3, s54")
E("v_cvt_pk_bf16_f32 v30, v28, v29"); unpack(30, 28, 29)
E("s_mov_b32 exec_lo, 0x80008000"); E("s_mov_b32 exec_hi, 0x80008000")
E("buffer_store_dwordx2 v[28:29], v31, s[12:15], 0 offen sc1")
E("s_mov_b64 exec, s[56:57]")
Lb(l)
E("s_cmp_eq_u32 s24, 0"); E("s_cbranch_scc0 L_parB")
E("v_mul_f32 v10, s51, v10"); E("v_exp_f32 v10, v10"); E("v_add_f32 v14, v37, v37"); E("v_mov_b32 v15, 0")
E("v_cvt_pk_bf16_f32 v10, v10, v10"); E("v_and_b32 v10, 0xffff0000, v10"); E("v_xor_b32 v10, 0x80000000, v10")
E("s_branch L_pardone")
Lb("L_parB")
E("v_mul_f32 v14, v37, v14"); E("v_mul_f32 v15, v37, v15")
Lb("L_pardone")
W1, W2, W4, W8, W16, W24, W32, W128, W256, W512 = [40 + 2 * i for i in range(10)]
Q = [60 + 2 * i for i in range(8)]; R = [76 + 2 * i for i in range(4)]; T = [84 + 2 * i for i in range(4)]
LF, HA, DT, HB = 96, 112, 128, 140
E("v_mul_f32 v10, v37, v10"); E("v_mul_f32 v11, v37, v11")
E("v_mul_f32 v10, s51, v10"); E("v_mul_f32 v11, 0.15915494, v11")
E("v_mul_f32 v34, 0x43000000, v10"); E("v_mul_f32 v35, 0x43000000, v11")
E("v_fract_f32 v11, v11"); E("v_fract_f32 v35, v35")
E("v_exp_f32 v10, v10"); E("v_exp_f32 v34, v34")
E(f"v_cos_f32 v{W1}, v11"); E(f"v_sin_f32 v{W1+1}, v11"); E(f"v_cos_f32 v{W128}, v35"); E(f"v_sin_f32 v{W128+1}, v35")
ct = [0]
def put(src, row, conj=False):
    t = 92 + ct[0]; ct[0] = (ct[0] + 1) % 4
    E(f"v_cvt_pk_bf16_f32 v{t}, v{src}, {'-' if conj else ''}v{src+1}")
    E(f"ds_write_b32 v{VEW}, v{t} offset:{row*ES}"); dsn[0] += 1
dsn = [0]
bi = [0]; gfc = [0]
def batch(items, pre=(), conj=False, mf=None):
    bi[0] += 1
    gathers(bi[0])
    for k, it in enumerate(items): E(f"v_pk_mul_f32 {v(T[k],2)}, {v(it[1],2)}, {v(it[2],2)} op_sel:[0,0] op_sel_hi:[0,1]")
    for (sr, row) in pre[:len(pre)//2]: put(sr, row, conj)
    if mf: mf(0)
    for k, it in enumerate(items): E(f"v_pk_fma_f32 {v(it[0],2)}, {v(it[1],2)}, {v(it[2],2)}, {v(T[k],2)} op_sel:[1,1,0] op_sel_hi:[1,0,1] neg_lo:[0,1,0]")
    for (sr, row) in pre[len(pre)//2:]: put(sr, row, conj)
    if mf: mf(1)
    for it in items:
        if len(it) > 3: put(it[0], it[3], conj)
    if bi[0] == GF[0]:
        l = role(False)
        E("s_waitcnt vmcnt(0)")
        E(f"v_mov_b32 v30, {CNT}"); E("v_mov_b32 v31, 1")
        E("s_mov_b64 exec, 1"); E("ds_add_rtn_u32 v29, v30, v31"); E("s_mov_b64 exec, s[56:57]")
        sv = vmq_h[:]; stamp(12); vmq_h[:] = sv
        Lb(l); gfc[0] = len(out)
    if bi[0] == GF[1]:
        n = sum(1 for x in out[gfc[0]:] if x.strip().startswith('ds_'))
        l = role(False)
        E(f"s_waitcnt lgkmcnt({min(n, 15)})")
        E("v_readfirstlane_b32 s60, v29")
        E("s_cmp_eq_u32 s60, 3"); E(f"s_cbranch_scc0 {l}")
        E("s_lshl_b32 s60, s2, 2"); E("v_mov_b32 v30, s60"); E("s_mov_b64 exec, 1")
        E("buffer_store_dword v31, v30, s[16:19], 0 offen sc1")
        E("s_mov_b64 exec, s[56:57]")
        Lb(l)
def readF(base):
    for ks in range(4): E(f"ds_read_b128 {v(base+4*ks,4)}, v{VER} offset:{64*ks}")
    dsn[0] = 0
def mfm(tile, hf, k0):
    def f(j):
        ks = k0 + j
        if ks == 0: E(f"s_waitcnt lgkmcnt({dsn[0]})")
        c = "0" if ks == 0 else v(DT+4*tile, 4)
        E(f"v_mfma_f32_16x16x32_bf16 {v(DT+4*tile,4)}, {v(hf+4*ks,4)}, {v(LF+4*ks,4)}, {c}")
    return f
E(f"v_pk_mul_f32 {v(T[0],2)}, v[12:13], v[14:15] op_sel:[0,0] op_sel_hi:[0,1]")
E(f"v_pk_mul_f32 {v(W1,2)}, {v(W1,2)}, v[10:11] op_sel_hi:[1,0]"); E(f"v_pk_mul_f32 {v(W128,2)}, {v(W128,2)}, v[34:35] op_sel_hi:[1,0]")
E(f"v_pk_fma_f32 {v(Q[0],2)}, v[12:13], v[14:15], {v(T[0],2)} op_sel:[1,1,0] op_sel_hi:[1,0,1] neg_lo:[0,1,0]")
batch([(W2, W1, W1), (W256, W128, W128), (Q[1], Q[0], W128, 8), (R[0], Q[0], W1, 1)], pre=[(Q[0], 0)])
batch([(W4, W2, W2), (W512, W256, W256), (R[1], Q[1], W1, 9), (Q[2], Q[0], W256)])
batch([(R[2], Q[0], W2, 2), (R[0], R[0], W2, 3), (R[3], Q[1], W2, 10), (R[1], R[1], W2, 11)])
batch([(W8, W4, W4), (Q[3], Q[1], W256), (Q[4], Q[0], W512), (Q[5], Q[1], W512)])
batch([(R[2], R[2], W2, 4), (R[0], R[0], W2, 5), (R[3], R[3], W2, 12), (R[1], R[1], W2, 13)])
batch([(W16, W8, W8), (Q[6], Q[2], W512), (Q[7], Q[3], W512)])
batch([(R[2], R[2], W2, 6), (R[0], R[0], W2, 7), (R[3], R[3], W2, 14), (R[1], R[1], W2, 15)])
readF(HA)
E("v_mov_b32 v36, 0x3f80"); E(f"ds_write_b32 v{VEW}, v36")
batch([(W24, W16, W8, 3), (W32, W16, W16, 4)], pre=[(W8, 1), (W16, 2)], conj=True)
batch([(R[1], W8, W32, 5), (R[2], W16, W32, 6), (R[3], W24, W32, 7), (R[0], W32, W32, 8)], conj=True)
batch([(R[1], R[1], W32, 9), (R[2], R[2], W32, 10), (R[3], R[3], W32, 11), (R[0], R[0], W32, 12)], conj=True)
batch([(R[1], R[1], W32, 13), (R[2], R[2], W32, 14), (R[3], R[3], W32, 15)], conj=True)
readF(LF)
batch([(R[0], Q[2], W2, 1), (R[1], Q[3], W2, 5), (R[2], Q[2], W4, 2), (R[3], Q[3], W4, 6)], pre=[(Q[2], 0), (Q[3], 4)])
batch([(R[2], R[2], W2, 3), (R[3], R[3], W2, 7), (R[0], Q[4], W4, 9), (R[1], Q[5], W4, 11)], pre=[(Q[4], 8), (Q[5], 10)], mf=mfm(0, HA, 0))
batch([(R[0], Q[6], W4, 13), (R[1], Q[7], W4, 15), (Q[4], Q[4], W512), (Q[5], Q[5], W512)], pre=[(Q[6], 12), (Q[7], 14)], mf=mfm(0, HA, 2))
readF(HB)
batch([(Q[6], Q[6], W512, 2), (Q[7], Q[7], W512, 3), (R[0], Q[4], W512, 4), (R[1], Q[5], W512, 5)], pre=[(Q[4], 0), (Q[5], 1)])
batch([(Q[6], Q[6], W512, 6), (Q[7], Q[7], W512, 7), (R[0], R[0], W512, 8)], mf=mfm(1, HB, 0))
readF(HA)
f = mfm(1, HB, 2); f(0); f(1)
E(f"s_mul_i32 s48, s67, 3072"); E(f"s_add_u32 s48, s48, {PX0}"); E("v_lshlrev_b32 v34, 4, v0"); E("v_add_u32 v34, s48, v34")
f = mfm(2, HA, 0); f(0); f(1); f = mfm(2, HA, 2); f(0); f(1)
E("s_cmp_lt_u32 s3, 4"); E("s_cbranch_scc0 L_helper")
vmq = None
VKB, VUA, VYW = 8, 9, 5
E("v_lshlrev_b32 v8, 1, v32"); E("v_sub_u32 v8, v33, v8"); E("v_add_u32 v8, 30, v8"); E("v_lshlrev_b32 v8, 4, v8"); E("v_add_u32 v8, s45, v8")
E("v_add_u32 v38, 1, v32"); E("v_and_b32 v35, 7, v38"); E("v_lshrrev_b32 v38, 3, v38"); E("v_add_u32 v38, v38, v33")
E("v_lshlrev_b32 v36, 2, v35"); E("v_lshrrev_b32 v36, v36, s47"); E("v_and_b32 v36, 15, v36")
E("v_add_u32 v38, v38, v36"); E("v_lshlrev_b32 v38, 4, v38"); E(f"v_mul_u32_u24 v9, {CS}, v35"); E("v_add_u32 v9, v9, v38")
E(f"s_mul_i32 s48, s23, {UCH}"); E("v_add_u32 v9, s48, v9")
E("v_lshrrev_b32 v40, 1, v33"); E("v_lshl_add_u32 v40, v40, 4, v32"); E("v_sub_u32 v40, 255, v40"); E("v_lshlrev_b32 v40, 4, v40")
E("v_and_b32 v41, 1, v33"); E("v_xor_b32 v41, 1, v41"); E("v_lshl_add_u32 v40, v41, 3, v40"); E("v_add_u32 v40, s45, v40")
E("v_lshl_add_u32 v44, v33, 4, v32"); E("v_add_u32 v44, 32, v44"); E("v_lshl_add_u32 v45, v33, 5, v32")
E("v_cndmask_b32 v44, v45, v44, s[62:63]")
E("v_lshlrev_b32 v45, 2, v44"); E("v_add_u32 v45, s46, v45")
E("v_sub_u32 v46, 255, v44"); E("v_lshlrev_b32 v46, 4, v46"); E("v_add_u32 v46, s45, v46")
E("v_lshl_add_u32 v47, v33, 6, v32"); E("v_lshlrev_b32 v47, 2, v47"); E("v_add_u32 v47, s46, v47")
E("v_lshlrev_b32 v48, 2, v0"); E("v_add_u32 v48, s46, v48")
E("v_sub_u32 v49, 63, v0"); E("v_lshlrev_b32 v49, 4, v49"); E("v_add_u32 v49, s45, v49")
E("v_and_b32 v50, 1, v0"); E("v_cmp_eq_u32 vcc, 1, v50"); E("v_mov_b32 v51, 0x07060100"); E("v_mov_b32 v50, 0x03020100")
E("v_cndmask_b32 v50, v51, v50, vcc")
E("v_mov_b32 v80, 0x03020100"); E("v_cndmask_b32 v51, v80, v51, s[62:63]")
E("v_bfe_u32 v5, v32, 1, 2"); E("v_xor_b32 v5, v5, v33"); E("v_lshlrev_b32 v5, 4, v5"); E("v_lshl_add_u32 v5, v32, 6, v5")
E(f"s_mul_i32 s61, s3, {YCB}"); E(f"s_add_u32 s61, s61, {Y0}"); E("v_add_u32 v5, s61, v5")
stamp(2)
E("s_barrier")
PXR = 144
for t_ in (1, 2, 0): E(f"ds_read_b128 {v(PXR+4*t_,4)}, v34 offset:{1024*t_}")
def padd(t_):
    for h in range(4): E(f"v_add_f32 v{DT+4*t_+h}, v{DT+4*t_+h}, v{PXR+4*t_+h}")
E("s_waitcnt lgkmcnt(1)"); padd(1); padd(2)
X = DT + 4
E(f"v_cvt_pk_bf16_f32 v55, v{X}, v{X}"); E(f"v_cvt_pk_bf16_f32 v59, v{X+2}, v{X+2}")
for i in range(4): E(f"v_cvt_pk_bf16_f32 v{62+i}, v{DT+8+i}, v{DT+8+i}")
E("ds_write_b32 v45, v55")
E("s_mov_b64 exec, s[58:59]"); E("s_mov_b32 exec_hi, -1")
E("ds_write_b32 v45, v59 offset:64")
E("s_mov_b64 exec, s[56:57]")
for i in range(4): E(f"ds_write_b32 v47, v{62+i} offset:{512+64*i}")
E("ds_read_b32 v52, v45 offset:4"); E("ds_read_b32 v56, v45 offset:68")
E("ds_read2_b32 v[66:67], v48 offset0:128 offset1:129"); E("ds_read2_b32 v[74:75], v48 offset0:192 offset1:193")
E("s_waitcnt lgkmcnt(10)"); padd(0)
E(f"v_cvt_pk_bf16_f32 v42, v{DT+3}, v{DT+2}"); E(f"v_cvt_pk_bf16_f32 v43, v{DT+1}, v{DT}")
E("ds_write_b64 v40, v[42:43]")
E(f"v_cndmask_b32 v60, v{X+1}, v{X+2}, s[62:63]"); E(f"v_cndmask_b32 v61, v{X}, v{X+1}, s[62:63]")
E("v_cvt_pk_bf16_f32 v53, v60, v60"); E("v_cvt_pk_bf16_f32 v54, v60, v61")
E(f"v_cvt_pk_bf16_f32 v57, v{X+3}, v{X+3}"); E(f"v_cvt_pk_bf16_f32 v58, v{X+3}, v{X+2}")
E("s_waitcnt lgkmcnt(3)")
E("v_perm_b32 v52, v57, v52, v51")
E("ds_write_b128 v46, v[52:55]")
E("s_mov_b64 exec, s[58:59]"); E("s_mov_b32 exec_hi, -1")
E("v_subrev_u32 v46, 256, v46")
E("ds_write_b128 v46, v[56:59]")
E("s_mov_b64 exec, s[56:57]")
E("s_waitcnt lgkmcnt(3)")
for (b, o) in ((64, 1024), (72, 0)):
    E(f"v_mov_b32 v{b}, v{b+3}"); E(f"v_perm_b32 v{b+1}, v{b+2}, v{b+3}, v50"); E(f"v_mov_b32 v{b+3}, v{b+2}")
    E(f"ds_write_b128 v49, {v(b,4)} offset:{o}")
stamp(3)
ACC = 24; POOL = 40; NSLOT = int(OPT.get('nslot', 52)); MAXFL = int(OPT.get('maxfl', 10)); AHEAD = int(OPT.get('ahead', 12))
LEAD = int(OPT.get('lead', 8)); YD = int(OPT.get('yd', 3)); YB = int(OPT.get('yb', 8))
seq = []
avail = 0
for ph, tl in enumerate(PHASES):
    k = max(tl) // 2
    newu = 2 * k + 2 > avail
    late = newu and k in LATE and k > 0
    old = avail
    if newu and not late: avail = 2 * k + 2
    if avail != old: seq.append(('bar', avail, ph))
    def part(lo, hi):
        for c in range(8):
            for a in range(lo, hi):
                for P in tl:
                    if a <= P: seq.append(('m', ('A', a, c), ('B', P - a, c), P, ACC + 8 * (ph & 1) + 4 * (P & 1)))
    if late:
        part(0, old); avail = 2 * k + 2; seq.insert(len(seq) - LEAD, ('bar', avail, None)); part(old, 8)
    else: part(0, 8)
    seq.append(('y', ph))
for ph in range(NPH - 1):
    i = seq.index(('y', ph)); seq.pop(i); seq.insert(i + YD, ('y', ph))
    if ph in eval(OPT.get('ybar', '[]')): seq.insert(i + YD + YB, ('bar', 2 * ph + 2, None))
uses = {}
for i, it in enumerate(seq):
    if it[0] == 'm':
        for f in it[1:3]: uses.setdefault(f, []).append(i)
def nxt(f, i):
    for u in uses[f]:
        if u >= i: return u
    return 10**9
q = []; slot = {}; free = list(range(NSLOT)); nload = 0
def need(f):
    global q
    if f in q:
        n = len(q) - 1 - q.index(f); assert n <= 15
        E(f"s_waitcnt lgkmcnt({n})"); q = q[len(q) - n:]
def load(f, i, pf):
    global nload
    if not free:
        vic = max(slot, key=lambda g: nxt(g, i))
        if nxt(vic, i) <= pf: return False
        free.append(slot.pop(vic))
    sl = free.pop(0); slot[f] = sl; nload += 1; q.append(f)
    if f[0] == 'A': E(f"ds_read_b128 {v(POOL+4*sl,4)}, v{VUA} offset:{512*f[1]+64*f[2]}")
    else: E(f"ds_read_b128 {v(POOL+4*sl,4)}, v{VKB} offset:{512*(7-f[1])+64*f[2]}")
    return True
cur = 0; pf = 0; started = set()
def prefetch(i, maxn):
    global pf
    n = 0
    while pf < len(seq) and pf <= i + AHEAD:
        it = seq[pf]
        if it[0] == 'm':
            for f in it[1:3]:
                if f not in slot:
                    if (f[0] == 'A' and f[1] >= cur) or len(q) >= MAXFL or n >= maxn: return
                    if not load(f, i, pf): return
                    n += 1
        pf += 1
for it in seq[1:1 + AHEAD]:
    if it[0] == 'm' and it[2] not in slot and len(q) < 8: load(it[2], 0, 0)
nb = 0
def ywait():
    global q
    if None in q:
        n = q[::-1].index(None); E(f"s_waitcnt lgkmcnt({n})"); q = q[len(q) - n:]
for i, it in enumerate(seq):
    if it[0] == 'bar':
        ywait()
        E("s_barrier"); cur = it[1]; stamp(4 + nb); nb += 1
        prefetch(i, 99)
    elif it[0] == 'y':
        ph = it[1]
        for P in PHASES[ph]:
            E(f"ds_write_b128 v{VYW}, {v(ACC + 8*(ph&1) + 4*(P&1), 4)} offset:{ph*YBUF + 1024*(P&1)}"); q.append(None)
    else:
        pf = max(pf, i)
        for f in it[1:3]:
            if f not in slot: assert load(f, i, i - 1)
        need(it[1]); need(it[2])
        P = it[3]; c = v(it[4], 4) if P in started else "0"; started.add(P)
        E(f"v_mfma_f32_16x16x32_bf16 {v(it[4],4)}, {v(POOL+4*slot[it[1]],4)}, {v(POOL+4*slot[it[2]],4)}, {c}")
        for f in it[1:3]:
            if nxt(f, i + 1) >= 10**9 and f in slot: free.append(slot.pop(f))
        prefetch(i + 1, 2)
print("conv loads", nload)
ywait()
E("s_barrier")
stamp(4 + nb, 14)
E("s_endpgm")
Lb("L_helper")
used.clear(); used.update([0, 1, 15])
vmq = vmq_h
def vmwait(tag):
    if tag not in vmq: return
    idx = max(i for i, t in enumerate(vmq) if t == tag)
    n = len(vmq) - 1 - idx
    E(f"s_waitcnt vmcnt({n})"); del vmq[:idx + 1]
E(f"s_setprio {PRIO}")
RAW = U0 + 16 * (OFF[0] + 2)
E("s_lshl_b32 s35, s67, 8")
E("v_lshlrev_b32 v5, 2, v0"); E("v_add_u32 v5, s35, v5"); E(f"v_add_u32 v5, {RAW}, v5")
for t_ in range(2): E(f"ds_write_b128 v34, {v(DT+4*t_,4)} offset:{1024*t_}")
E("v_and_b32 v6, 7, v0"); E("v_lshlrev_b32 v6, 1, v6"); E("v_add_u32 v6, s35, v6"); E(f"v_add_u32 v6, {RAW-16}, v6")
E(f"ds_write_b128 v34, {v(DT+8,4)} offset:2048")
E("v_and_b32 v7, 15, v0"); E("v_lshlrev_b32 v7, 4, v7"); E("v_add_u32 v7, s35, v7")
E("v_lshrrev_b32 v2, 5, v0"); E(f"v_mul_u32_u24 v2, {UCH}, v2"); E("v_add_u32 v7, v7, v2")
E("s_mov_b32 s40, 0x05040100"); E("s_mov_b32 s41, 0x07060302")
E("s_waitcnt lgkmcnt(0)")
stamp(2)
E("s_barrier")
def raw(k):
    vmwait(('u', k))
    x, r0, r1 = UR + 3*k, UR + 3*k + 1, UR + 3*k + 2
    E(f"v_perm_b32 v40, v{r1}, v{r0}, s40"); E(f"v_perm_b32 v41, v{r1}, v{r0}, s41")
    E(f"ds_write_b32 v5, v40 offset:{1024*k}"); E(f"ds_write_b32 v5, v41 offset:{1024*k+UCH}")
    E("s_mov_b64 exec, 0xff")
    E(f"ds_write_b16 v6, v{x} offset:{1024*k}"); E(f"ds_write_b16_d16_hi v6, v{x} offset:{1024*k+UCH}")
    E("s_mov_b64 exec, s[56:57]")
def copies(k, first=False):
    raw(k)
    if first:
        E("v_bfe_u32 v2, v0, 4, 1"); E("v_lshl_add_u32 v3, v2, 3, v7"); E(f"v_add_u32 v3, {RAW-16}, v3"); E("v_cmp_eq_u32 vcc, 1, v2")
    for j in range(3): E(f"ds_read_b64 {v(44+2*j,2)}, v3 offset:{1024*k+8*j}")
    if first:
        for j in range(4):
            E(f"v_mov_b32 v{10+j}, {U0 + j*CS + 16*(OFF[j]+1)}"); E(f"v_mov_b32 v14, {U0 + (4+j)*CS + 16*(OFF[4+j]+1)}")
            E(f"v_cndmask_b32 v{10+j}, v{10+j}, v14, vcc"); E(f"v_add_u32 v{10+j}, v{10+j}, v7")
    E("s_waitcnt lgkmcnt(0)")
    E(f"ds_write_b128 v10, v[44:47] offset:{1024*k}")
    for i in range(4): E(f"v_alignbit_b32 v{52+i}, v{45+i}, v{44+i}, 16")
    E(f"ds_write_b128 v11, v[52:55] offset:{1024*k}")
    for i in range(4): E(f"v_mov_b32 v{56+i}, v{45+i}")
    E(f"ds_write_b128 v12, v[56:59] offset:{1024*k}")
    for i in range(4): E(f"v_alignbit_b32 v{60+i}, v{46+i}, v{45+i}, 16")
    E(f"ds_write_b128 v13, v[60:63] offset:{1024*k}")
def episetup():
    E("s_lshl_b32 s42, s67, 9"); E("v_lshlrev_b32 v14, 3, v0"); E("v_add_u32 v14, s42, v14")
    E("v_bfe_u32 v2, v14, 7, 2"); E("v_lshlrev_b32 v2, 4, v2"); E("v_xor_b32 v14, v2, v14"); E(f"v_add_u32 v14, {Y0}, v14")
    E("v_mov_b32 v28, s72"); E("v_mov_b32 v29, s73"); unpack(28, 30, 31); unpack(29, 28, 29)
    E("v_sub_f32 v30, v30, v28"); E("v_sub_f32 v31, v31, v29")
def epilogue(ph):
    tl = PHASES[ph]; k = tl[0] // 2
    if len(tl) == 1:
        lab[0] += 1; l = f"L_e{lab[0]}"
        E("s_cmp_lt_u32 s67, 2"); E(f"s_cbranch_scc{tl[0] & 1} {l}")
    yb = ph * YBUF
    for cb in range(4): E(f"ds_read_b64 {v(64+2*cb,2)}, v14 offset:{yb + cb*YCB}")
    r0, r1 = UR + 3*k + 1, UR + 3*k + 2
    unpack(r0, 74, 76); unpack(r1, 75, 77)
    E("s_waitcnt lgkmcnt(0)")
    for i in range(4): E(f"v_sub_f32 v{64+i}, v{64+i}, v{68+i}")
    for i in range(4): E(f"v_fmac_f32 v{68+i}, v{74+i}, v{28+i//2}")
    for i in range(4): E(f"v_fmac_f32 v{64+i}, v{74+i}, v{30+i//2}")
    if 'g' in vmq: vmwait('g')
    for i in range(4): E(f"v_fma_f32 v{64+i}, v{64+i}, v{90+2*k+(i&1)}, v{68+i}")
    o = 80 + 2 * k
    E(f"v_cvt_pk_bf16_f32 v{o}, v64, v66"); E(f"v_cvt_pk_bf16_f32 v{o+1}, v65, v67")
    E(f"buffer_store_dword v{o}, v8, s[8:11], s{76+k} offen"); E(f"buffer_store_dword v{o+1}, v8, s[8:11], s{76+k} offen offset:1024")
    if len(tl) == 1: Lb(l)
    else: vmq.extend(['st', 'st'])
SCH = OPT.get('sch', 'r4,c0/p,r5,c1,s/r6,k,r7,c2/c3,e0,e1/e2/e3').split('/')
def act(t):
    if t[0] == 'r': gather_h(int(t[1]))
    elif t[0] == 'c': copies(int(t[1]), t[1] == '0')
    elif t[0] == 'e': epilogue(int(t[1]))
    elif t == 's': episetup()
    elif t == 'p':
        E("v_lshlrev_b32 v99, 2, v0"); E("buffer_load_dword v98, v99, s[16:19], 0 offen sc1"); vmq.append('p')
        E("s_mov_b32 s64, 0"); E("s_mov_b32 s65, 1"); E("s_movk_i32 s43, 4096")
        E("s_lshl_b32 s42, s67, 9"); E("v_lshlrev_b32 v15, 3, v0"); E("v_add_u32 v15, s42, v15")
    elif t == 'k':
        vmwait('p')
        Lb("L_poll")
        E("v_cmp_ne_u32 vcc, s65, v98"); E("s_cbranch_vccz L_pollok")
        E("s_add_u32 s64, s64, 1"); E("s_cmp_gt_u32 s64, 2000000"); E("s_cbranch_scc1 L_pollok")
        E("s_sleep 1"); E("buffer_load_dword v98, v99, s[16:19], 0 offen sc1"); E("s_waitcnt vmcnt(0)"); E("s_branch L_poll")
        Lb("L_pollok")
        for k in range(4):
            E(f"buffer_load_dwordx2 {v(90+2*k,2)}, v15, s[12:15], {'s43' if k > 1 else '0'} offen offset:{2048*(k&1)} sc1"); vmq.append('g')
nb = 0
assert len(SCH) == sum(1 for it in seq if it[0] == 'bar') + 2
for j, ts in enumerate(SCH):
    for t in ts.split(','):
        if t: act(t)
    stamp(3 + nb); nb += 1
    if j < len(SCH) - 1: E("s_waitcnt lgkmcnt(0)"); E("s_barrier")
if STAMP:
    E("s_waitcnt vmcnt(0)"); stamp(3 + nb, 14)
Lb("L_end")
E("s_endpgm")
import os; sys.path.insert(0, os.path.dirname(__file__)); import hz
out, ncnt = hz.fix(out, int(OPT.get('hzv', 0))); print('hazard nops', ncnt)
hdr = open('cdna_kernels/%s.s.ref' % NAME).read().split('\n')
hdr = [l for l in hdr if l.startswith(';') and '@launch' not in l and l.startswith('; ') ]
txt = '\n'.join(hdr[:22]) + f"\n; @launch grid=(256,1,1) block=(512,1,1) lds={LDS}\n"
txt += f""".amdgcn_target "amdgcn-amd-amdhsa--gfx950"
.text
.globl {NAME}_kernel
.p2align 8
.type {NAME}_kernel,@function
{NAME}_kernel:
""" + '\n'.join(out) + f"""
.section .rodata,"a"
.p2align 6
.amdhsa_kernel {NAME}_kernel
  .amdhsa_next_free_vgpr 256
  .amdhsa_next_free_sgpr 102
  .amdhsa_accum_offset 256
  .amdhsa_group_segment_fixed_size 0
  .amdhsa_kernarg_size 160
  .amdhsa_user_sgpr_count 2
  .amdhsa_user_sgpr_kernarg_segment_ptr 1
  .amdhsa_system_sgpr_workgroup_id_x 1
.end_amdhsa_kernel
"""
txt = txt.replace('NCODE', OPT.get('ncode', '200'))
open(sys.argv[1], 'w').write(txt)
print("LDS", LDS, "lines", len(out))
```

```python
import sys, math, struct
NAME = "gated_mix__ssm_conv_s4d__ssm_conv_s4__prompt"
OPT = dict(a.split('=') for a in sys.argv[2:] if '=' in a)
STAMP = int(OPT.get('stamp', 0))
PHASES = eval(OPT.get('phases', '[[0,1],[2,3],[4,5],[6],[7]]'))
NPH = len(PHASES)
out = []
def E(s): out.append("    " + s)
def Lb(s): out.append(s + ":")
def f2u(x): return struct.unpack('<I', struct.pack('<f', x))[0]
def v(i, n=1): return f"v{i}" if n == 1 else f"v[{i}:{i+n-1}]"
def s(i, n=1): return f"s{i}" if n == 1 else f"s[{i}:{i+n-1}]"
def nop(n):
    if n > 0: E(f"s_nop {n-1}")

LATE = eval(OPT.get('late', '[2,3]'))
GPOS = eval(OPT.get('gpos', '[0,2,9,14,99,101,102,103]'))
GF = eval(OPT.get('gf', '[6,8]'))
PRIO = int(OPT.get('prio', 3))
OFF = [12, 3, 7, 6, 10, 12, 1, 0]
CS = 272 * 16
UCH = 8 * CS
U0 = 0
KR0 = 2 * UCH; KRS = 288 * 16
E0 = KR0 + 4 * KRS; ES = 288; EW = 16 * ES
Y0 = E0; YCB = 2048; YBUF = 4 * YCB
G0 = E0 + 2 * YBUF
PX0 = E0 + 8 * EW
CNT = PX0 + 4 * 3072
LDS = CNT + 16
offc = 0
for i, o in enumerate(OFF): offc |= o << (4 * i)
SREG = {**{k: 80 + 2 * k for k in range(9)}, 15: 98, 14: 100, 9: 28, 10: 30, 11: 32, 12: 36, 13: 38}
used = set()
def stamp(k, real=None):
    if not STAMP: return
    E(f"s_memtime s[{SREG[k]}:{SREG[k]+1}]"); used.add(k)
    if real is not None: E(f"s_memrealtime s[{SREG[real]}:{SREG[real]+1}]"); used.add(real)
    if real == 14:
        E("s_waitcnt lgkmcnt(0)")
        E("s_lshl_b32 s20, s2, 3"); E("s_add_u32 s20, s20, s3"); E("s_lshl_b32 s20, s20, 6"); E("s_add_u32 s20, s20, 0x100000"); E("v_mov_b32 v251, s20")
        for j in sorted(used):
            E(f"v_mov_b32 v250, s{SREG[j]}"); E(f"buffer_store_dword v250, v251, s[12:15], 0 offen offset:{4*j}")
vmq = None
lab = [0]
def role(helper):
    lab[0] += 1; l = f"L_r{lab[0]}"
    if helper: E("s_cmp_lt_u32 s3, 4"); E(f"s_cbranch_scc1 {l}")
    else: E("s_cmp_eq_u32 s75, 0"); E(f"s_cbranch_scc0 {l}")
    return l
def unpack(src, lo, hi):
    E(f"v_lshlrev_b32 v{lo}, 16, v{src}"); E(f"v_and_b32 v{hi}, 0xffff0000, v{src}")
E("s_cmp_ge_u32 s2, 256"); E("s_cbranch_scc1 L_end")
E("s_load_dwordx2 s[4:5], s[0:1], 0")
E("s_load_dwordx4 s[8:11], s[0:1], 136")
E("s_load_dwordx2 s[12:13], s[0:1], 152")
CPF = int(OPT.get('cpf', 0))
if CPF:
    E(f"s_cmp_ge_u32 s2, {CPF}"); E("s_cbranch_scc1 L_nopf")
    E("s_getpc_b64 s[90:91]"); E("v_lshlrev_b32 v252, 6, v0"); E("v_mov_b32 v253, s91")
    E("v_add_co_u32 v252, vcc, s90, v252"); E("v_addc_co_u32 v253, vcc, 0, v253, vcc")
    E("v_cmp_gt_u32 vcc, NCODE, v0"); E("s_and_saveexec_b64 s[92:93], vcc"); E("s_cbranch_execz L_pfskip")
    E("global_load_dword v254, v[252:253], off")
    Lb("L_pfskip"); E("s_mov_b64 exec, s[92:93]")
    Lb("L_nopf")
E("v_lshrrev_b32 v1, 6, v0"); E("v_and_b32 v0, 63, v0")
E("v_readfirstlane_b32 s3, v1")
E("s_load_dwordx2 s[42:43], s[0:1], 128")
E("s_load_dwordx2 s[68:69], s[0:1], 48"); E("s_load_dwordx2 s[70:71], s[0:1], 120")
E("s_bfe_u32 s24, s3, 0x10001"); E("s_cmp_eq_u32 s24, 0"); E("s_cbranch_scc0 L_ptrB")
E("s_load_dwordx4 s[28:31], s[0:1], 8"); E("s_load_dwordx4 s[36:39], s[0:1], 24")
E("s_load_dwordx2 s[40:41], s[0:1], 40"); E("s_load_dwordx4 s[32:35], s[0:1], 8")
E("s_branch L_ptrdone")
Lb("L_ptrB")
E("s_load_dwordx4 s[28:31], s[0:1], 64"); E("s_load_dwordx4 s[32:35], s[0:1], 80")
E("s_load_dwordx4 s[36:39], s[0:1], 96"); E("s_load_dwordx2 s[40:41], s[0:1], 112")
Lb("L_ptrdone")
E("s_and_b32 s20, s2, 7"); E("s_lshr_b32 s21, s2, 3")
E("s_lshl_b32 s20, s20, 5"); E("s_add_u32 s20, s20, s21"); E("s_lshl_b32 s22, s20, 2")
E("s_and_b32 s23, s3, 1"); E("s_lshr_b32 s66, s3, 2"); E("s_and_b32 s67, s3, 3")
E("s_lshl_b32 s25, s20, 1"); E("s_add_u32 s25, s25, s23"); E("s_lshl_b32 s25, s25, 8"); E("s_lshl_b32 s26, s66, 7"); E("s_add_u32 s25, s25, s26")
E("v_lshlrev_b32 v2, 1, v0"); E("v_add_u32 v2, s25, v2")
for i in range(10, 16): E(f"v_mov_b32 v{i}, 0")
E("s_lshr_b32 s75, s2, 6"); E("s_lshr_b32 s27, s3, 2"); E("s_or_b32 s75, s75, s27"); E("s_movk_i32 s61, 4096")
E("s_lshl_b32 s26, s2, 2"); E("s_add_u32 s26, s26, s3"); E("s_lshl_b32 s26, s26, 13")
E("v_lshlrev_b32 v3, 4, v0"); E("v_add_u32 v4, s26, v3")
E("s_lshl_b32 s26, s21, 6"); E("s_lshl_b32 s27, s67, 4"); E("s_add_u32 s26, s26, s27")
E("v_and_b32 v1, 15, v0"); E("v_add_u32 v1, s26, v1"); E("v_lshlrev_b32 v1, 10, v1"); E("v_add_u32 v1, s22, v1")
E("s_waitcnt lgkmcnt(0)")
E("s_mov_b32 s16, s10"); E("s_mov_b32 s17, s11")
E("s_mov_b32 s6, 0x200000"); E("s_mov_b32 s7, 0x20000"); E("s_mov_b32 s10, 0x200000"); E("s_mov_b32 s11, 0x20000")
E("s_mov_b32 s14, 0x200000"); E("s_mov_b32 s15, 0x20000"); E("s_mov_b32 s18, 256"); E("s_mov_b32 s19, 0x20000")
E("s_load_dword s44, s[40:41], s22"); E("s_load_dword s72, s[68:69], s22"); E("s_load_dword s73, s[70:71], s22")
for r, p in ((10, 28), (11, 30), (12, 36), (13, 38), (14, 32), (15, 34)):
    E(f"global_load_short_d16_hi v{r}, v2, s[{p}:{p+1}]")
l = role(False)
for r in range(8): E(f"buffer_load_dwordx4 {v(160+4*r,4)}, v4, s[4:7], {'s61' if r > 3 else '0'} offen offset:{1024*(r&3)}")
E("global_load_dwordx4 v[24:27], v3, s[42:43]")
if int(OPT.get('kprio', 0)): E("s_setprio 2")
Lb(l)
l = role(True)
E("buffer_load_dword v1, v1, s[4:7], 0 offen")
if int(OPT.get('kprio', 0)): E(f"s_setprio {OPT['kprio']}")
Lb(l)
stamp(0, 15)
E(f"s_mul_i32 s45, s67, {KRS}"); E(f"s_add_u32 s45, s45, {KR0}")
E(f"s_mul_i32 s46, s3, {EW}"); E(f"s_add_u32 s46, s46, {E0}")
E(f"s_mov_b32 s47, {offc}")
for i in range(4): E(f"v_mov_b32 v{28+i}, 0")
E("v_and_b32 v5, 31, v0"); E("v_lshlrev_b32 v5, 4, v5"); E("v_add_u32 v5, s45, v5"); E("ds_write_b128 v5, v[28:31] offset:4096")
E("v_and_b32 v5, 7, v0"); E("v_lshlrev_b32 v6, 2, v5"); E("v_lshrrev_b32 v6, v6, s47"); E("v_and_b32 v6, 15, v6")
E("v_lshlrev_b32 v6, 4, v6"); E(f"v_mul_u32_u24 v5, {CS}, v5"); E("v_add_u32 v5, v5, v6")
E("v_bfe_u32 v6, v0, 3, 1"); E(f"v_mul_u32_u24 v6, {UCH}, v6"); E("v_add_u32 v5, v5, v6")
E("ds_write_b128 v5, v[28:31]")
E(f"v_mov_b32 v5, {CNT}"); E("ds_write_b32 v5, v28")
VEW, VER = 6, 7
E("v_lshlrev_b32 v6, 2, v0"); E("v_add_u32 v6, s46, v6")
E("v_and_b32 v32, 15, v0"); E("v_lshrrev_b32 v33, 4, v0")
E(f"v_mul_u32_u24 v7, {ES}, v32"); E("v_lshl_add_u32 v7, v33, 4, v7"); E("v_add_u32 v7, s46, v7")
E("v_lshlrev_b32 v8, 11, v0"); E("v_add_u32 v8, s22, v8")
E("v_and_b32 v9, 7, v0"); E("v_lshlrev_b32 v9, 10, v9"); E("v_add_u32 v9, s22, v9"); E("v_subrev_u32 v9, 0x2000, v9")
E("s_lshl_b32 s74, s67, 17")
for k in range(4): E(f"s_add_u32 s{76+k}, s74, {k * 512 * 1024}")
E("s_mov_b64 s[56:57], exec"); E("s_mov_b32 s58, 0"); E("s_mov_b32 s59, 0x80000000"); E("s_mov_b32 s62, -1"); E("s_mov_b32 s63, 0")
E("s_waitcnt lgkmcnt(0)"); E("s_barrier")
E("s_lshl_b32 s49, s44, 16"); E("s_and_b32 s50, s44, 0xffff0000"); E("s_cmp_eq_u32 s23, 0"); E("s_cselect_b32 s49, s49, s50")
E(f"s_mov_b32 s51, {f2u(1.4426950408889634)}"); E("v_mov_b32 v37, s49"); E("v_mul_f32 v37, s51, v37"); E("v_exp_f32 v37, v37")
E("v_cvt_pk_bf16_f32 v37, v37, v37"); E("v_and_b32 v37, 0xffff0000, v37")
l = role(False)
E("s_waitcnt vmcnt(9)"); E("s_branch L_w1")
Lb(l)
l = role(True)
E("s_waitcnt vmcnt(1)"); E("s_branch L_w1")
Lb(l)
E("s_waitcnt vmcnt(0)")
Lb("L_w1")
stamp(1)
UR = 16
vmq_h = []
def gather_h(r):
    k, j = r // 2, r & 1
    if j == 0:
        E(f"buffer_load_dword v{UR+3*k+1}, v8, s[4:7], s{76+k} offen"); vmq_h.append(('u', k))
    else:
        E(f"v_add_u32 v4, s{76+k}, v9")
        E(f"buffer_load_dword v{UR+3*k+2}, v8, s[4:7], s{76+k} offen offset:1024")
        E("s_mov_b64 exec, 0xff"); E(f"buffer_load_dword v{UR+3*k}, v4, s[4:7], 0 offen"); E("s_mov_b64 exec, s[56:57]")
        vmq_h.extend([('u', k)] * 2)
def gathers(pos):
    rs = [r for r in range(8) if GPOS[r] == pos]
    if rs and pos < 99: l = role(True)
    for r in rs: gather_h(r)
    if rs and pos < 99: Lb(l)
vmq = vmq_h
gathers(0)
def gate():
    l = role(False)
    E("s_waitcnt vmcnt(0)")
    for j in range(4):
        for r in range(8): E(f"v_dot2_f32_bf16 v{192+r}, v{160+4*r+j}, v{24+j}, {'0' if j == 0 else 'v%d' % (192+r)}")
    for r in range(4): E(f"v_permlane32_swap_b32 v{192+r}, v{196+r}")
    for r in range(4): E(f"v_add_f32 v{192+r}, v{192+r}, v{196+r}")
    for r in range(2): E(f"v_permlane16_swap_b32 v{192+r}, v{194+r}")
    for r in range(2): E(f"v_add_f32 v{28+r}, v{192+r}, v{194+r}")
    for dpp in ("row_shr:1", "row_shr:2", "row_shr:4", "row_shr:8"):
        for rr in range(2): E(f"v_add_f32_dpp v{28+rr}, v{28+rr}, v{28+rr} {dpp} row_mask:0xf bank_mask:0xf")
    E("v_cvt_pk_bf16_f32 v30, v28, v29"); unpack(30, 28, 29)
    for rr in range(2): E(f"v_mul_f32 v{28+rr}, s51, v{28+rr}")
    for rr in range(2): E(f"v_exp_f32 v{28+rr}, -v{28+rr}")
    for rr in range(2): E(f"v_add_f32 v{28+rr}, 1.0, v{28+rr}")
    for rr in range(2): E(f"v_rcp_f32 v{28+rr}, v{28+rr}")
    E("s_lshl_b32 s54, s2, 7"); E("s_lshl_b32 s55, s3, 5"); E("s_add_u32 s54, s54, s55"); E("v_lshl_add_u32 v31, v33, 3, s54")
    E("v_cvt_pk_bf16_f32 v30, v28, v29"); unpack(30, 28, 29)
    E("s_mov_b32 exec_lo, 0x80008000"); E("s_mov_b32 exec_hi, 0x80008000")
    E("buffer_store_dwordx2 v[28:29], v31, s[12:15], 0 offen sc1")
    E("s_mov_b64 exec, s[56:57]")
    Lb(l)
GATE = int(OPT.get('gate', 0))
if GATE == 0: gate()
E("s_cmp_eq_u32 s24, 0"); E("s_cbranch_scc0 L_parB")
E("v_mul_f32 v10, s51, v10"); E("v_exp_f32 v10, v10"); E("v_add_f32 v14, v37, v37"); E("v_mov_b32 v15, 0")
E("v_cvt_pk_bf16_f32 v10, v10, v10"); E("v_and_b32 v10, 0xffff0000, v10"); E("v_xor_b32 v10, 0x80000000, v10")
E("s_branch L_pardone")
Lb("L_parB")
E("v_mul_f32 v14, v37, v14"); E("v_mul_f32 v15, v37, v15")
Lb("L_pardone")
W1, W2, W4, W8, W16, W24, W32, W128, W256, W512 = [40 + 2 * i for i in range(10)]
Q = [60 + 2 * i for i in range(8)]; R = [76 + 2 * i for i in range(4)]; T = [84 + 2 * i for i in range(4)]
LF, HA, DT, HB = 96, 112, 128, 140
E("v_mul_f32 v10, v37, v10"); E("v_mul_f32 v11, v37, v11")
E("v_mul_f32 v10, s51, v10"); E("v_mul_f32 v11, 0.15915494, v11")
E("v_mul_f32 v34, 0x43000000, v10"); E("v_mul_f32 v35, 0x43000000, v11")
E("v_fract_f32 v11, v11"); E("v_fract_f32 v35, v35")
E("v_exp_f32 v10, v10"); E("v_exp_f32 v34, v34")
E(f"v_cos_f32 v{W1}, v11"); E(f"v_sin_f32 v{W1+1}, v11"); E(f"v_cos_f32 v{W128}, v35"); E(f"v_sin_f32 v{W128+1}, v35")
ct = [0]
def put(src, row, conj=False):
    t = 92 + ct[0]; ct[0] = (ct[0] + 1) % 4
    E(f"v_cvt_pk_bf16_f32 v{t}, v{src}, {'-' if conj else ''}v{src+1}")
    E(f"ds_write_b32 v{VEW}, v{t} offset:{row*ES}"); dsn[0] += 1
dsn = [0]
bi = [0]; gfc = [0]
def batch(items, pre=(), conj=False, mf=None):
    bi[0] += 1
    gathers(bi[0])
    if bi[0] == GATE: gate()
    for k, it in enumerate(items): E(f"v_pk_mul_f32 {v(T[k],2)}, {v(it[1],2)}, {v(it[2],2)} op_sel:[0,0] op_sel_hi:[0,1]")
    for (sr, row) in pre[:len(pre)//2]: put(sr, row, conj)
    if mf: mf(0)
    for k, it in enumerate(items): E(f"v_pk_fma_f32 {v(it[0],2)}, {v(it[1],2)}, {v(it[2],2)}, {v(T[k],2)} op_sel:[1,1,0] op_sel_hi:[1,0,1] neg_lo:[0,1,0]")
    for (sr, row) in pre[len(pre)//2:]: put(sr, row, conj)
    if mf: mf(1)
    for it in items:
        if len(it) > 3: put(it[0], it[3], conj)
    if bi[0] == GF[0]:
        l = role(False)
        E("s_waitcnt vmcnt(0)")
        E(f"v_mov_b32 v30, {CNT}"); E("v_mov_b32 v31, 1")
        E("s_mov_b64 exec, 1"); E("ds_add_rtn_u32 v29, v30, v31"); E("s_mov_b64 exec, s[56:57]")
        sv = vmq_h[:]; stamp(12); vmq_h[:] = sv
        Lb(l); gfc[0] = len(out)
    if bi[0] == GF[1]:
        n = sum(1 for x in out[gfc[0]:] if x.strip().startswith('ds_'))
        l = role(False)
        E(f"s_waitcnt lgkmcnt({min(n, 15)})")
        E("v_readfirstlane_b32 s60, v29")
        if int(OPT.get('kprio', 0)): E("s_setprio 0")
        E("s_cmp_eq_u32 s60, 3"); E(f"s_cbranch_scc0 {l}")
        E("s_lshl_b32 s60, s2, 2"); E("v_mov_b32 v30, s60"); E("s_mov_b64 exec, 1")
        E("buffer_store_dword v31, v30, s[16:19], 0 offen sc1")
        E("s_mov_b64 exec, s[56:57]")
        Lb(l)
def readF(base):
    for ks in range(4): E(f"ds_read_b128 {v(base+4*ks,4)}, v{VER} offset:{64*ks}")
    dsn[0] = 0
def mfm(tile, hf, k0):
    def f(j):
        ks = k0 + j
        if ks == 0: E(f"s_waitcnt lgkmcnt({dsn[0]})")
        c = "0" if ks == 0 else v(DT+4*tile, 4)
        E(f"v_mfma_f32_16x16x32_bf16 {v(DT+4*tile,4)}, {v(hf+4*ks,4)}, {v(LF+4*ks,4)}, {c}")
    return f
E(f"v_pk_mul_f32 {v(T[0],2)}, v[12:13], v[14:15] op_sel:[0,0] op_sel_hi:[0,1]")
E(f"v_pk_mul_f32 {v(W1,2)}, {v(W1,2)}, v[10:11] op_sel_hi:[1,0]"); E(f"v_pk_mul_f32 {v(W128,2)}, {v(W128,2)}, v[34:35] op_sel_hi:[1,0]")
E(f"v_pk_fma_f32 {v(Q[0],2)}, v[12:13], v[14:15], {v(T[0],2)} op_sel:[1,1,0] op_sel_hi:[1,0,1] neg_lo:[0,1,0]")
batch([(W2, W1, W1), (W256, W128, W128), (Q[1], Q[0], W128, 8), (R[0], Q[0], W1, 1)], pre=[(Q[0], 0)])
batch([(W4, W2, W2), (W512, W256, W256), (R[1], Q[1], W1, 9), (Q[2], Q[0], W256)])
batch([(R[2], Q[0], W2, 2), (R[0], R[0], W2, 3), (R[3], Q[1], W2, 10), (R[1], R[1], W2, 11)])
batch([(W8, W4, W4), (Q[3], Q[1], W256), (Q[4], Q[0], W512), (Q[5], Q[1], W512)])
batch([(R[2], R[2], W2, 4), (R[0], R[0], W2, 5), (R[3], R[3], W2, 12), (R[1], R[1], W2, 13)])
batch([(W16, W8, W8), (Q[6], Q[2], W512), (Q[7], Q[3], W512)])
batch([(R[2], R[2], W2, 6), (R[0], R[0], W2, 7), (R[3], R[3], W2, 14), (R[1], R[1], W2, 15)])
readF(HA)
E("v_mov_b32 v36, 0x3f80"); E(f"ds_write_b32 v{VEW}, v36")
batch([(W24, W16, W8, 3), (W32, W16, W16, 4)], pre=[(W8, 1), (W16, 2)], conj=True)
batch([(R[1], W8, W32, 5), (R[2], W16, W32, 6), (R[3], W24, W32, 7), (R[0], W32, W32, 8)], conj=True)
batch([(R[1], R[1], W32, 9), (R[2], R[2], W32, 10), (R[3], R[3], W32, 11), (R[0], R[0], W32, 12)], conj=True)
batch([(R[1], R[1], W32, 13), (R[2], R[2], W32, 14), (R[3], R[3], W32, 15)], conj=True)
readF(LF)
batch([(R[0], Q[2], W2, 1), (R[1], Q[3], W2, 5), (R[2], Q[2], W4, 2), (R[3], Q[3], W4, 6)], pre=[(Q[2], 0), (Q[3], 4)])
batch([(R[2], R[2], W2, 3), (R[3], R[3], W2, 7), (R[0], Q[4], W4, 9), (R[1], Q[5], W4, 11)], pre=[(Q[4], 8), (Q[5], 10)], mf=mfm(0, HA, 0))
batch([(R[0], Q[6], W4, 13), (R[1], Q[7], W4, 15), (Q[4], Q[4], W512), (Q[5], Q[5], W512)], pre=[(Q[6], 12), (Q[7], 14)], mf=mfm(0, HA, 2))
readF(HB)
batch([(Q[6], Q[6], W512, 2), (Q[7], Q[7], W512, 3), (R[0], Q[4], W512, 4), (R[1], Q[5], W512, 5)], pre=[(Q[4], 0), (Q[5], 1)])
batch([(Q[6], Q[6], W512, 6), (Q[7], Q[7], W512, 7), (R[0], R[0], W512, 8)], mf=mfm(1, HB, 0))
readF(HA)
f = mfm(1, HB, 2); f(0); f(1)
E(f"s_mul_i32 s48, s67, 3072"); E(f"s_add_u32 s48, s48, {PX0}"); E("v_lshlrev_b32 v34, 4, v0"); E("v_add_u32 v34, s48, v34")
f = mfm(2, HA, 0); f(0); f(1); f = mfm(2, HA, 2); f(0); f(1)
E("s_cmp_lt_u32 s3, 4"); E("s_cbranch_scc0 L_helper")
vmq = None
VKB, VUA, VYW = 8, 9, 5
E("v_lshlrev_b32 v8, 1, v32"); E("v_sub_u32 v8, v33, v8"); E("v_add_u32 v8, 30, v8"); E("v_lshlrev_b32 v8, 4, v8"); E("v_add_u32 v8, s45, v8")
E("v_add_u32 v38, 1, v32"); E("v_and_b32 v35, 7, v38"); E("v_lshrrev_b32 v38, 3, v38"); E("v_add_u32 v38, v38, v33")
E("v_lshlrev_b32 v36, 2, v35"); E("v_lshrrev_b32 v36, v36, s47"); E("v_and_b32 v36, 15, v36")
E("v_add_u32 v38, v38, v36"); E("v_lshlrev_b32 v38, 4, v38"); E(f"v_mul_u32_u24 v9, {CS}, v35"); E("v_add_u32 v9, v9, v38")
E(f"s_mul_i32 s48, s23, {UCH}"); E("v_add_u32 v9, s48, v9")
E("v_lshrrev_b32 v40, 1, v33"); E("v_lshl_add_u32 v40, v40, 4, v32"); E("v_sub_u32 v40, 255, v40"); E("v_lshlrev_b32 v40, 4, v40")
E("v_and_b32 v41, 1, v33"); E("v_xor_b32 v41, 1, v41"); E("v_lshl_add_u32 v40, v41, 3, v40"); E("v_add_u32 v40, s45, v40")
E("v_lshl_add_u32 v44, v33, 4, v32"); E("v_add_u32 v44, 32, v44"); E("v_lshl_add_u32 v45, v33, 5, v32")
E("v_cndmask_b32 v44, v45, v44, s[62:63]")
E("v_lshlrev_b32 v45, 2, v44"); E("v_add_u32 v45, s46, v45")
E("v_sub_u32 v46, 255, v44"); E("v_lshlrev_b32 v46, 4, v46"); E("v_add_u32 v46, s45, v46")
E("v_lshl_add_u32 v47, v33, 6, v32"); E("v_lshlrev_b32 v47, 2, v47"); E("v_add_u32 v47, s46, v47")
E("v_lshlrev_b32 v48, 2, v0"); E("v_add_u32 v48, s46, v48")
E("v_sub_u32 v49, 63, v0"); E("v_lshlrev_b32 v49, 4, v49"); E("v_add_u32 v49, s45, v49")
E("v_and_b32 v50, 1, v0"); E("v_cmp_eq_u32 vcc, 1, v50"); E("v_mov_b32 v51, 0x07060100"); E("v_mov_b32 v50, 0x03020100")
E("v_cndmask_b32 v50, v51, v50, vcc")
E("v_mov_b32 v80, 0x03020100"); E("v_cndmask_b32 v51, v80, v51, s[62:63]")
E("v_bfe_u32 v5, v32, 1, 2"); E("v_xor_b32 v5, v5, v33"); E("v_lshlrev_b32 v5, 4, v5"); E("v_lshl_add_u32 v5, v32, 6, v5")
E(f"s_mul_i32 s61, s3, {YCB}"); E(f"s_add_u32 s61, s61, {Y0}"); E("v_add_u32 v5, s61, v5")
stamp(2)
E("s_barrier")
PXR = 144
for t_ in (1, 2, 0): E(f"ds_read_b128 {v(PXR+4*t_,4)}, v34 offset:{1024*t_}")
def padd(t_):
    for h in range(4): E(f"v_add_f32 v{DT+4*t_+h}, v{DT+4*t_+h}, v{PXR+4*t_+h}")
E("s_waitcnt lgkmcnt(1)"); padd(1); padd(2)
X = DT + 4
E(f"v_cvt_pk_bf16_f32 v55, v{X}, v{X}"); E(f"v_cvt_pk_bf16_f32 v59, v{X+2}, v{X+2}")
for i in range(4): E(f"v_cvt_pk_bf16_f32 v{62+i}, v{DT+8+i}, v{DT+8+i}")
E("ds_write_b32 v45, v55")
E("s_mov_b64 exec, s[58:59]"); E("s_mov_b32 exec_hi, -1")
E("ds_write_b32 v45, v59 offset:64")
E("s_mov_b64 exec, s[56:57]")
for i in range(4): E(f"ds_write_b32 v47, v{62+i} offset:{512+64*i}")
E("ds_read_b32 v52, v45 offset:4"); E("ds_read_b32 v56, v45 offset:68")
E("ds_read2_b32 v[66:67], v48 offset0:128 offset1:129"); E("ds_read2_b32 v[74:75], v48 offset0:192 offset1:193")
E("s_waitcnt lgkmcnt(10)"); padd(0)
E(f"v_cvt_pk_bf16_f32 v42, v{DT+3}, v{DT+2}"); E(f"v_cvt_pk_bf16_f32 v43, v{DT+1}, v{DT}")
E("ds_write_b64 v40, v[42:43]")
E(f"v_cndmask_b32 v60, v{X+1}, v{X+2}, s[62:63]"); E(f"v_cndmask_b32 v61, v{X}, v{X+1}, s[62:63]")
E("v_cvt_pk_bf16_f32 v53, v60, v60"); E("v_cvt_pk_bf16_f32 v54, v60, v61")
E(f"v_cvt_pk_bf16_f32 v57, v{X+3}, v{X+3}"); E(f"v_cvt_pk_bf16_f32 v58, v{X+3}, v{X+2}")
E("s_waitcnt lgkmcnt(3)")
E("v_perm_b32 v52, v57, v52, v51")
E("ds_write_b128 v46, v[52:55]")
E("s_mov_b64 exec, s[58:59]"); E("s_mov_b32 exec_hi, -1")
E("v_subrev_u32 v46, 256, v46")
E("ds_write_b128 v46, v[56:59]")
E("s_mov_b64 exec, s[56:57]")
E("s_waitcnt lgkmcnt(3)")
for (b, o) in ((64, 1024), (72, 0)):
    E(f"v_mov_b32 v{b}, v{b+3}"); E(f"v_perm_b32 v{b+1}, v{b+2}, v{b+3}, v50"); E(f"v_mov_b32 v{b+3}, v{b+2}")
    E(f"ds_write_b128 v49, {v(b,4)} offset:{o}")
stamp(3)
ACC = 24; POOL = 40; NSLOT = int(OPT.get('nslot', 52)); MAXFL = int(OPT.get('maxfl', 10)); AHEAD = int(OPT.get('ahead', 12))
LEAD = int(OPT.get('lead', 8)); YD = int(OPT.get('yd', 3)); YB = int(OPT.get('yb', 8))
seq = []
avail = 0
for ph, tl in enumerate(PHASES):
    k = max(tl) // 2
    newu = 2 * k + 2 > avail
    late = newu and k in LATE and k > 0
    old = avail
    if newu and not late: avail = 2 * k + 2
    if avail != old: seq.append(('bar', avail, ph))
    def part(lo, hi):
        for c in range(8):
            for a in range(lo, hi):
                for P in tl:
                    if a <= P: seq.append(('m', ('A', a, c), ('B', P - a, c), P, ACC + 8 * (ph & 1) + 4 * (P & 1)))
    if late:
        part(0, old); avail = 2 * k + 2; seq.insert(len(seq) - LEAD, ('bar', avail, None)); part(old, 8)
    else: part(0, 8)
    seq.append(('y', ph))
for ph in range(NPH - 1):
    i = seq.index(('y', ph)); seq.pop(i); seq.insert(i + YD, ('y', ph))
    if ph in eval(OPT.get('ybar', '[]')): seq.insert(i + YD + YB, ('bar', 2 * ph + 2, None))
uses = {}
for i, it in enumerate(seq):
    if it[0] == 'm':
        for f in it[1:3]: uses.setdefault(f, []).append(i)
def nxt(f, i):
    for u in uses[f]:
        if u >= i: return u
    return 10**9
q = []; slot = {}; free = list(range(NSLOT)); nload = 0
def need(f):
    global q
    if f in q:
        n = len(q) - 1 - q.index(f); assert n <= 15
        E(f"s_waitcnt lgkmcnt({n})"); q = q[len(q) - n:]
def load(f, i, pf):
    global nload
    if not free:
        vic = max(slot, key=lambda g: nxt(g, i))
        if nxt(vic, i) <= pf: return False
        free.append(slot.pop(vic))
    sl = free.pop(0); slot[f] = sl; nload += 1; q.append(f)
    if f[0] == 'A': E(f"ds_read_b128 {v(POOL+4*sl,4)}, v{VUA} offset:{512*f[1]+64*f[2]}")
    else: E(f"ds_read_b128 {v(POOL+4*sl,4)}, v{VKB} offset:{512*(7-f[1])+64*f[2]}")
    return True
cur = 0; pf = 0; started = set()
def prefetch(i, maxn):
    global pf
    n = 0
    while pf < len(seq) and pf <= i + AHEAD:
        it = seq[pf]
        if it[0] == 'm':
            for f in it[1:3]:
                if f not in slot:
                    if (f[0] == 'A' and f[1] >= cur) or len(q) >= MAXFL or n >= maxn: return
                    if not load(f, i, pf): return
                    n += 1
        pf += 1
for it in seq[1:1 + AHEAD]:
    if it[0] == 'm' and it[2] not in slot and len(q) < 8: load(it[2], 0, 0)
nb = 0
def ywait():
    global q
    if None in q:
        n = q[::-1].index(None); E(f"s_waitcnt lgkmcnt({n})"); q = q[len(q) - n:]
for i, it in enumerate(seq):
    if it[0] == 'bar':
        ywait()
        if nb or not int(OPT.get('nob0', 0)): E("s_barrier")
        cur = it[1]; stamp(4 + nb); nb += 1
        prefetch(i, 99)
    elif it[0] == 'y':
        ph = it[1]
        for P in PHASES[ph]:
            E(f"ds_write_b128 v{VYW}, {v(ACC + 8*(ph&1) + 4*(P&1), 4)} offset:{ph*YBUF + 1024*(P&1)}"); q.append(None)
    else:
        pf = max(pf, i)
        for f in it[1:3]:
            if f not in slot: assert load(f, i, i - 1)
        need(it[1]); need(it[2])
        P = it[3]; c = v(it[4], 4) if P in started else "0"; started.add(P)
        E(f"v_mfma_f32_16x16x32_bf16 {v(it[4],4)}, {v(POOL+4*slot[it[1]],4)}, {v(POOL+4*slot[it[2]],4)}, {c}")
        for f in it[1:3]:
            if nxt(f, i + 1) >= 10**9 and f in slot: free.append(slot.pop(f))
        prefetch(i + 1, int(OPT.get('npf', 2)))
print("conv loads", nload)
ywait()
E("s_barrier")
stamp(4 + nb, 14)
E("s_endpgm")
Lb("L_helper")
used.clear(); used.update([0, 1, 15])
vmq = vmq_h
def vmwait(tag):
    if tag not in vmq: return
    idx = max(i for i, t in enumerate(vmq) if t == tag)
    n = len(vmq) - 1 - idx
    E(f"s_waitcnt vmcnt({n})"); del vmq[:idx + 1]
E(f"s_setprio {PRIO}")
RAW = U0 + 16 * (OFF[0] + 2)
E("s_lshl_b32 s35, s67, 8")
E("v_lshlrev_b32 v5, 2, v0"); E("v_add_u32 v5, s35, v5"); E(f"v_add_u32 v5, {RAW}, v5")
for t_ in range(2): E(f"ds_write_b128 v34, {v(DT+4*t_,4)} offset:{1024*t_}")
E("v_and_b32 v6, 7, v0"); E("v_lshlrev_b32 v6, 1, v6"); E("v_add_u32 v6, s35, v6"); E(f"v_add_u32 v6, {RAW-16}, v6")
E(f"ds_write_b128 v34, {v(DT+8,4)} offset:2048")
E("v_and_b32 v7, 15, v0"); E("v_lshlrev_b32 v7, 4, v7"); E("v_add_u32 v7, s35, v7")
E("v_lshrrev_b32 v2, 5, v0"); E(f"v_mul_u32_u24 v2, {UCH}, v2"); E("v_add_u32 v7, v7, v2")
E("s_mov_b32 s40, 0x05040100"); E("s_mov_b32 s41, 0x07060302")
NOB0 = int(OPT.get('nob0', 0))
if not NOB0:
    E("s_waitcnt lgkmcnt(0)")
    stamp(2)
    E("s_barrier")
def raw(k):
    vmwait(('u', k))
    x, r0, r1 = UR + 3*k, UR + 3*k + 1, UR + 3*k + 2
    E(f"v_perm_b32 v40, v{r1}, v{r0}, s40"); E(f"v_perm_b32 v41, v{r1}, v{r0}, s41")
    E(f"ds_write_b32 v5, v40 offset:{1024*k}"); E(f"ds_write_b32 v5, v41 offset:{1024*k+UCH}")
    E("s_mov_b64 exec, 0xff")
    E(f"ds_write_b16 v6, v{x} offset:{1024*k}"); E(f"ds_write_b16_d16_hi v6, v{x} offset:{1024*k+UCH}")
    E("s_mov_b64 exec, s[56:57]")
def copies(k, first=False):
    raw(k)
    if first:
        E("v_bfe_u32 v2, v0, 4, 1"); E("v_lshl_add_u32 v3, v2, 3, v7"); E(f"v_add_u32 v3, {RAW-16}, v3"); E("v_cmp_eq_u32 vcc, 1, v2")
    for j in range(3): E(f"ds_read_b64 {v(44+2*j,2)}, v3 offset:{1024*k+8*j}")
    if first:
        for j in range(4):
            E(f"v_mov_b32 v{10+j}, {U0 + j*CS + 16*(OFF[j]+1)}"); E(f"v_mov_b32 v14, {U0 + (4+j)*CS + 16*(OFF[4+j]+1)}")
            E(f"v_cndmask_b32 v{10+j}, v{10+j}, v14, vcc"); E(f"v_add_u32 v{10+j}, v{10+j}, v7")
    E("s_waitcnt lgkmcnt(0)")
    E(f"ds_write_b128 v10, v[44:47] offset:{1024*k}")
    for i in range(4): E(f"v_alignbit_b32 v{52+i}, v{45+i}, v{44+i}, 16")
    E(f"ds_write_b128 v11, v[52:55] offset:{1024*k}")
    for i in range(4): E(f"v_mov_b32 v{56+i}, v{45+i}")
    E(f"ds_write_b128 v12, v[56:59] offset:{1024*k}")
    for i in range(4): E(f"v_alignbit_b32 v{60+i}, v{46+i}, v{45+i}, 16")
    E(f"ds_write_b128 v13, v[60:63] offset:{1024*k}")
def episetup():
    E("s_lshl_b32 s42, s67, 9"); E("v_lshlrev_b32 v14, 3, v0"); E("v_add_u32 v14, s42, v14")
    E("v_bfe_u32 v2, v14, 7, 2"); E("v_lshlrev_b32 v2, 4, v2"); E("v_xor_b32 v14, v2, v14"); E(f"v_add_u32 v14, {Y0}, v14")
    E("v_mov_b32 v28, s72"); E("v_mov_b32 v29, s73"); unpack(28, 30, 31); unpack(29, 28, 29)
    E("v_sub_f32 v30, v30, v28"); E("v_sub_f32 v31, v31, v29")
def epilogue(ph):
    tl = PHASES[ph]; k = tl[0] // 2
    if len(tl) == 1:
        lab[0] += 1; l = f"L_e{lab[0]}"
        E("s_cmp_lt_u32 s67, 2"); E(f"s_cbranch_scc{tl[0] & 1} {l}")
    yb = ph * YBUF
    for cb in range(4): E(f"ds_read_b64 {v(64+2*cb,2)}, v14 offset:{yb + cb*YCB}")
    r0, r1 = UR + 3*k + 1, UR + 3*k + 2
    unpack(r0, 74, 76); unpack(r1, 75, 77)
    E("s_waitcnt lgkmcnt(0)")
    for i in range(4): E(f"v_sub_f32 v{64+i}, v{64+i}, v{68+i}")
    for i in range(4): E(f"v_fmac_f32 v{68+i}, v{74+i}, v{28+i//2}")
    for i in range(4): E(f"v_fmac_f32 v{64+i}, v{74+i}, v{30+i//2}")
    if 'g' in vmq: vmwait('g')
    for i in range(4): E(f"v_fma_f32 v{64+i}, v{64+i}, v{90+2*k+(i&1)}, v{68+i}")
    o = 80 + 2 * k
    E(f"v_cvt_pk_bf16_f32 v{o}, v64, v66"); E(f"v_cvt_pk_bf16_f32 v{o+1}, v65, v67")
    E(f"buffer_store_dword v{o}, v8, s[8:11], s{76+k} offen"); E(f"buffer_store_dword v{o+1}, v8, s[8:11], s{76+k} offen offset:1024")
    if len(tl) == 1: Lb(l)
    else: vmq.extend(['st', 'st'])
SCH = OPT.get('sch', 'r4,c0/p,r5,c1,s/r6,k,r7,c2/c3,e0,e1/e2/e3').split('/')
def act(t):
    if t[0] == 'r': gather_h(int(t[1]))
    elif t[0] == 'c': copies(int(t[1]), t[1] == '0')
    elif t[0] == 'e': epilogue(int(t[1]))
    elif t == 's': episetup()
    elif t[0] == 'q': E(f"s_setprio {t[1]}")
    elif t == 'p':
        E("v_lshlrev_b32 v99, 2, v0"); E("buffer_load_dword v98, v99, s[16:19], 0 offen sc1"); vmq.append('p')
        E("s_mov_b32 s64, 0"); E("s_mov_b32 s65, 1"); E("s_movk_i32 s43, 4096")
        E("s_lshl_b32 s42, s67, 9"); E("v_lshlrev_b32 v15, 3, v0"); E("v_add_u32 v15, s42, v15")
    elif t in 'kKg':
      if t != 'g':
        vmwait('p')
        if t == 'K': E("s_cmp_lg_u32 s67, 0"); E("s_cbranch_scc1 L_pollok")
        Lb("L_poll")
        E("v_cmp_ne_u32 vcc, s65, v98"); E("s_cbranch_vccz L_pollok")
        E("s_add_u32 s64, s64, 1"); E("s_cmp_gt_u32 s64, 1000000"); E("s_cbranch_scc1 L_pollok")
        E("s_sleep 12"); E("buffer_load_dword v98, v99, s[16:19], 0 offen sc1"); E("s_waitcnt vmcnt(0)"); E("s_branch L_poll")
        Lb("L_pollok")
      if t != 'K':
        for k in range(4):
            E(f"buffer_load_dwordx2 {v(90+2*k,2)}, v15, s[12:15], {'s43' if k > 1 else '0'} offen offset:{2048*(k&1)} sc1"); vmq.append('g')
nb = 0
assert len(SCH) == sum(1 for it in seq if it[0] == 'bar') + 2
for j, ts in enumerate(SCH):
    for t in ts.split(','):
        if t: act(t)
    stamp(3 + nb); nb += 1
    if j < len(SCH) - 1: E("s_waitcnt lgkmcnt(0)"); E("s_barrier")
if STAMP:
    E("s_waitcnt vmcnt(0)"); stamp(3 + nb, 14)
Lb("L_end")
E("s_endpgm")
import os; sys.path.insert(0, os.path.dirname(__file__)); import hz
out, ncnt = hz.fix(out, int(OPT.get('hzv', 0))); print('hazard nops', ncnt)
hdr = open('cdna_kernels/%s.s.ref' % NAME).read().split('\n')
hdr = [l for l in hdr if l.startswith(';') and '@launch' not in l and l.startswith('; ') ]
txt = '\n'.join(hdr[:22]) + f"\n; @launch grid=(256,1,1) block=(512,1,1) lds={LDS}\n"
txt += f""".amdgcn_target "amdgcn-amd-amdhsa--gfx950"
.text
.globl {NAME}_kernel
.p2align 8
.type {NAME}_kernel,@function
{NAME}_kernel:
""" + '\n'.join(out) + f"""
.section .rodata,"a"
.p2align 6
.amdhsa_kernel {NAME}_kernel
  .amdhsa_next_free_vgpr 256
  .amdhsa_next_free_sgpr 102
  .amdhsa_accum_offset 256
  .amdhsa_group_segment_fixed_size 0
  .amdhsa_kernarg_size 160
  .amdhsa_user_sgpr_count 2
  .amdhsa_user_sgpr_kernarg_segment_ptr 1
  .amdhsa_system_sgpr_workgroup_id_x 1
.end_amdhsa_kernel
"""
txt = txt.replace('NCODE', OPT.get('ncode', '200'))
open(sys.argv[1], 'w').write(txt)
print("LDS", LDS, "lines", len(out))
```
